```python
import torch

def _softmax(x, axis=-1):
    return torch.softmax(x, dim=axis)
def _gelu(x):
    return torch.nn.functional.gelu(x, approximate="tanh")
def _silu(x):
    return torch.nn.functional.silu(x)
def _sigmoid(x):
    return torch.sigmoid(x)
def _layernorm(x, axis=-1, eps=1e-5):
    m = x.mean(dim=axis, keepdim=True)
    v = x.var(dim=axis, keepdim=True, unbiased=False)
    return (x - m) / torch.sqrt(v + eps)
def _scatter_add(tgt, idx, src, axis=0):
    return tgt.clone().index_add_(axis, idx, src)
def _segment_sum(src, seg, n):
    out = torch.zeros((n,) + src.shape[1:], dtype=src.dtype)
    return out.index_add_(0, seg, src)
def _pad(x, pw):
    flat = tuple(v for pair in reversed(pw) for v in pair)
    return torch.nn.functional.pad(x, flat)

kernel_name = 'standalone__linear_attn_block__prompt'

def setup_inputs():

    _w = (lambda a: (lambda t: t.to(torch.bfloat16) if t.is_floating_point() else t)(torch.as_tensor(a)))
    B, S, D = 1, 2048, 576
    return {
        "x": _w((lambda *s: torch.randn(*s, dtype=torch.bfloat16) * 0.05)(B, S, D)),
        "wqkv": _w((lambda *s: torch.randn(*s, dtype=torch.bfloat16) * 0.4)(D, 3 * D)),
        "wo": _w((lambda *s: torch.randn(*s, dtype=torch.bfloat16) * 0.05)(D, D)),
    }

def reference(x, wqkv, wo):
    B, S, D = x.shape
    H = 32; Dh = D // H
    qkv = (lambda x, *d: x.permute(*d))((x @ wqkv).reshape(B, S, 3, H, Dh), 2, 0, 3, 1, 4)
    q, k, v = qkv[0], qkv[1], qkv[2]
    phi = lambda t: torch.where(t > 0, t + 1, torch.exp(t)) + 1e-6
    pq, pk = phi(q), phi(k)
    kv = torch.einsum("bhsd,bhse->bhde", pk, v)
    z = torch.einsum("bhsd->bhd", pk)
    num = torch.einsum("bhqd,bhde->bhqe", pq, kv)
    den = torch.einsum("bhqd,bhd->bhq", pq, z)[..., None] + 1e-6
    o = num / den
    return (lambda x, *d: x.permute(*d))(o, 0, 2, 1, 3).reshape(B, S, D) @ wo
```

```python
class Asm:
    def __init__(self):
        self.L = []
        self.uid = 0
    def e(self, s=""):
        self.L.append("  " + s if s and not s.endswith(":") else s)
    def c(self, s):
        self.L.append("  ; " + s)
    def label(self, s):
        self.L.append(s + ":")
    def newlabel(self, p="L"):
        self.uid += 1
        return f"{p}_{self.uid}"
    def nop(self, n):
        while n > 0:
            k = min(n, 16)
            self.e(f"s_nop {k-1}")
            n -= k
    def text(self):
        return "\n".join(self.L) + "\n"

def vr(a, n=1):
    return f"v{a}" if n == 1 else f"v[{a}:{a+n-1}]"
def ar(a, n=1):
    return f"a{a}" if n == 1 else f"a[{a}:{a+n-1}]"
def sr(a, n=1):
    return f"s{a}" if n == 1 else f"s[{a}:{a+n-1}]"

class VAlloc:
    def __init__(self, start=0, limit=256):
        self.n = start; self.limit = limit; self.names = {}
    def get(self, name, cnt=1, align=1):
        a = (self.n + align - 1) // align * align
        assert a + cnt <= self.limit, f"out of regs for {name}"
        self.n = a + cnt
        self.names[name] = (a, cnt)
        return a
```

```python
from asmlib import *

PQ_STILE = 18432
KVS_OFF = 2359296
WS_BYTES = KVS_OFF + 32*1520
STAGE = 40960
import os
NST = int(os.environ.get('NST', '3'))
NPRE = int(os.environ.get('NPRE', '2'))
LOG2E = 0x3fb8aa3b
EPS = 0x358637bd

def gen_k1(a: Asm, name, rot=True, stamps=False, opts=()):
    A = a
    sWave = 24; sXcd = 25; sJ = 26; sMt = 27; sG = 28; sT0 = 29; sT1 = 30; sT2 = 31
    sC0 = 32
    sStageLd = 33
    sStageRd = 34
    sIt = 35
    sMX = 36; sMW = 37; sSo = 38; sXo = 39; sWo = 40
    sBaseW = 41; sD = 42; sDelta = 43; sHalf = 44; sRb = 45
    sU = 46
    sLog2e = 50; sEps = 51; sX = 52
    sExec = 54
    sM0 = 56
    sM1 = 58
    sSt = 60
    V = VAlloc(1, 256)
    vLane = V.get("lane"); vT0 = V.get("t0"); vT1 = V.get("t1"); vT2 = V.get("t2"); vT3 = V.get("t3"); vT4 = V.get("t4"); vT5 = V.get("t5")
    vL15 = V.get("l15"); vG = V.get("g"); vR = V.get("r"); vC = V.get("c")
    vXA = V.get("xa"); vW = V.get("w", 3)
    vRXb = V.get("rxb", 2); vRWb = V.get("rwb", 5)
    vRX = V.get("rx", 2); vRW = V.get("rw", 5)
    vFlag = V.get("flag"); vFlagA = V.get("flaga")
    F = []
    for f in range(2):
        fx = V.get(f"fx{f}", 8, 4); fw = V.get(f"fw{f}", 20, 4)
        F.append((fx, fw))
    vAcc = V.get("acc", 40, 4)
    vP = V.get("p", 24, 4)
    vOnes = V.get("ones", 4, 4)
    nv = V.n

    A.label(name)
    A.e("s_cmp_ge_u32 s2, 200"); A.e(f"s_cbranch_scc1 {name}_end")
    if stamps: A.e(f"s_memtime s[{sSt}:{sSt+1}]")
    A.e("s_load_dwordx4 s[4:7], s[0:1], 0")
    A.e("s_load_dwordx4 s[16:19], s[0:1], 32")
    A.e(f"v_lshrrev_b32 {vr(vT0)}, 6, v0")
    A.e(f"v_and_b32 {vr(vLane)}, 63, v0")
    A.e(f"s_and_b32 s{sXcd}, s2, 7")
    A.e(f"v_readfirstlane_b32 s{sWave}, {vr(vT0)}")
    A.e(f"s_lshr_b32 s{sJ}, s2, 3")
    A.e(f"s_cmp_eq_u32 s{sJ}, 0"); A.e(f"s_cbranch_scc1 {name}_zero")
    A.e(f"s_sub_u32 s{sJ}, s{sJ}, 1")
    A.e(f"v_and_b32 {vr(vL15)}, 15, {vr(vLane)}")
    A.e(f"v_lshrrev_b32 {vr(vG)}, 4, {vr(vLane)}")
    A.e(f"v_bfe_u32 {vr(vR)}, {vr(vLane)}, 2, 2")
    A.e(f"v_and_b32 {vr(vC)}, 3, {vr(vLane)}")
    A.e(f"s_lshr_b32 s{sHalf}, s{sWave}, 2")
    A.e(f"s_and_b32 s{sRb}, s{sWave}, 3")
    A.e(f"s_and_b32 s{sT0}, s{sXcd}, 3"); A.e(f"s_lshl_b32 s{sT0}, s{sT0}, 2"); A.e(f"s_and_b32 s{sT1}, s{sJ}, 3"); A.e(f"s_add_u32 s{sMt}, s{sT0}, s{sT1}")
    if rot:
        A.e(f"s_lshr_b32 s{sT0}, s{sJ}, 2"); A.e(f"s_lshl_b32 s{sT1}, s{sT1}, 1"); A.e(f"s_add_u32 s{sC0}, s{sT0}, s{sT1}")
        A.e(f"s_cmp_ge_u32 s{sC0}, 9"); A.e(f"s_cselect_b32 s{sT0}, 9, 0"); A.e(f"s_sub_u32 s{sC0}, s{sC0}, s{sT0}")
    else:
        A.e(f"s_mov_b32 s{sC0}, 0")
    A.e(f"s_lshr_b32 s{sT2}, s{sXcd}, 2")
    A.e(f"s_cmp_ge_u32 s{sJ}, 16"); A.e(f"s_cbranch_scc1 {name}_setq")
    A.e(f"s_lshl_b32 s{sT2}, s{sT2}, 2"); A.e(f"s_lshr_b32 s{sT0}, s{sJ}, 2"); A.e(f"s_add_u32 s{sG}, s{sT2}, s{sT0}")
    A.e(f"s_mul_i32 s{sT0}, s{sG}, 144"); A.e(f"s_and_b32 s{sT0}, s{sT0}, 0xffffffc0"); A.e(f"s_add_u32 s{sBaseW}, s{sT0}, 1152")
    A.e(f"s_movk_i32 s{sD}, 960")
    A.e(f"s_and_b32 s{sDelta}, s{sG}, 3"); A.e(f"s_lshl_b32 s{sDelta}, s{sDelta}, 1")
    A.e(f"s_mul_i32 s{sT0}, s{sHalf}, 9"); A.e(f"s_add_u32 s{sT0}, s{sT0}, s{sDelta}")
    for t, u in enumerate([0, 5, 24, 29]): A.e(f"s_add_u32 s{sU+t}, s{sT0}, {u}")
    A.e(f"v_and_b32 {vr(vT0)}, 1, {vr(vC)}"); A.e(f"v_mul_u32_u24 {vr(vT0)}, 9, {vr(vT0)}")
    A.e(f"v_lshrrev_b32 {vr(vT1)}, 1, {vr(vC)}"); A.e(f"v_mul_u32_u24 {vr(vT1)}, 24, {vr(vT1)}")
    A.e(f"v_add3_u32 {vr(vT5)}, {vr(vT0)}, {vr(vT1)}, 4")
    A.e(f"s_branch {name}_setc")
    A.label(f"{name}_setq")
    A.e(f"s_lshl_b32 s{sT2}, s{sT2}, 1"); A.e(f"s_sub_u32 s{sT0}, s{sJ}, 16"); A.e(f"s_lshr_b32 s{sT0}, s{sT0}, 2"); A.e(f"s_add_u32 s{sG}, s{sT2}, s{sT0}")
    A.e(f"s_mul_i32 s{sT0}, s{sG}, 288"); A.e(f"s_and_b32 s{sBaseW}, s{sT0}, 0xffffffc0")
    A.e(f"s_sub_u32 s{sDelta}, s{sT0}, s{sBaseW}"); A.e(f"s_lshr_b32 s{sDelta}, s{sDelta}, 3")
    A.e(f"s_mov_b32 s{sD}, 0")
    A.e(f"s_mul_i32 s{sT0}, s{sHalf}, 18"); A.e(f"s_add_u32 s{sT0}, s{sT0}, s{sDelta}")
    for t, u in enumerate([0, 5, 9, 14]): A.e(f"s_add_u32 s{sU+t}, s{sT0}, {u}")
    A.e(f"v_mul_u32_u24 {vr(vT5)}, 9, {vr(vC)}"); A.e(f"v_add_u32 {vr(vT5)}, 4, {vr(vT5)}")
    A.label(f"{name}_setc")
    A.e(f"v_add_u32 {vr(vT5)}, s{sDelta}, {vr(vT5)}")
    A.e(f"s_lshl_b32 s{sT0}, s{sMt}, 7"); A.e(f"s_lshl_b32 s{sT1}, s{sWave}, 4"); A.e(f"s_add_u32 s{sT0}, s{sT0}, s{sT1}")
    A.e(f"v_lshrrev_b32 {vr(vT0)}, 3, {vr(vLane)}"); A.e(f"v_and_b32 {vr(vT1)}, 7, {vr(vLane)}"); A.e(f"v_xor_b32 {vr(vT1)}, {vr(vT1)}, {vr(vT0)}")
    A.e(f"v_add_u32 {vr(vT0)}, s{sT0}, {vr(vT0)}"); A.e(f"v_mul_u32_u24 {vr(vT0)}, 1152, {vr(vT0)}")
    A.e(f"v_lshl_add_u32 {vr(vXA)}, {vr(vT1)}, 4, {vr(vT0)}")
    A.e(f"s_and_b32 s{sT2}, s{sWave}, 1"); A.e(f"s_lshl_b32 s{sT2}, s{sT2}, 2")
    A.e(f"s_lshl_b32 s{sT1}, s{sWave}, 3")
    for i in range(3):
        A.e(f"v_add_u32 {vr(vT0)}, {64*i}, {vr(vLane)}")
        A.e(f"v_mul_u32_u24 {vr(vT1)}, 2731, {vr(vT0)}"); A.e(f"v_lshrrev_b32 {vr(vT1)}, 16, {vr(vT1)}")
        A.e(f"v_mul_u32_u24 {vr(vT2)}, 24, {vr(vT1)}"); A.e(f"v_sub_u32 {vr(vT2)}, {vr(vT0)}, {vr(vT2)}")
        A.e(f"v_and_b32 {vr(vT3)}, 2, {vr(vT1)}"); A.e(f"v_xor_b32 {vr(vT2)}, {vr(vT2)}, {vr(vT3)}")
        A.e(f"v_xor_b32 {vr(vT2)}, s{sT2}, {vr(vT2)}")
        A.e(f"v_add_u32 {vr(vT1)}, s{sT1}, {vr(vT1)}"); A.e(f"v_mul_u32_u24 {vr(vT1)}, 3456, {vr(vT1)}")
        A.e(f"v_lshl_add_u32 {vr(vT1)}, {vr(vT2)}, 4, {vr(vT1)}")
        A.e(f"v_mov_b32 {vr(vT3)}, s{sD}")
        A.e(f"v_cmp_le_u32 vcc, 12, {vr(vT2)}")
        A.e(f"v_add_u32 {vr(vT1)}, s{sBaseW}, {vr(vT1)}")
        A.e(f"s_nop 0")
        A.e(f"v_cndmask_b32 {vr(vT3)}, 0, {vr(vT3)}, vcc")
        A.e(f"v_add_u32 {vr(vW+i)}, {vr(vT1)}, {vr(vT3)}")
        if i: A.e(f"v_subrev_u32 {vr(vW+i)}, {1024*i}, {vr(vW+i)}")
    A.e(f"s_lshl_b32 s{sMX}, s{sWave}, 11")
    A.e(f"s_mul_i32 s{sMW}, s{sWave}, 3072"); A.e(f"s_add_u32 s{sMW}, s{sMW}, 16384")
    A.e(f"s_mov_b32 s{sStageLd}, 0")
    A.e(f"s_lshl_b32 s{sXo}, s{sC0}, 7")
    A.e("s_mov_b32 s10, 2359296"); A.e("s_mov_b32 s11, 0x20000")
    A.e("s_mov_b32 s14, 1990656"); A.e("s_mov_b32 s15, 0x20000")
    A.e("s_waitcnt lgkmcnt(0)")
    A.e("s_mov_b32 s8, s4"); A.e("s_mov_b32 s9, s5")
    A.e("s_mov_b32 s12, s6"); A.e("s_mov_b32 s13, s7")
    def post_setup():
        A.e(f"v_lshl_add_u32 {vr(vT0)}, {vr(vG)}, 3, {vr(vR)}")
        A.e(f"v_mul_u32_u24 {vr(vT0)}, 384, {vr(vT0)}"); A.e(f"v_add_u32 {vr(vT0)}, 16384, {vr(vT0)}")
        A.e(f"v_lshrrev_b32 {vr(vT1)}, 1, {vr(vR)}"); A.e(f"v_lshlrev_b32 {vr(vT1)}, 2, {vr(vT1)}")
        A.e(f"v_and_b32 {vr(vT2)}, 1, {vr(vG)}"); A.e(f"v_lshl_or_b32 {vr(vT1)}, {vr(vT2)}, 3, {vr(vT1)}")
        for t in range(4):
            A.e(f"v_add_u32 {vr(vT2)}, s{sU+t}, {vr(vC)}")
            A.e(f"v_xor_b32 {vr(vT2)}, {vr(vT2)}, {vr(vT1)}")
            A.e(f"v_lshl_add_u32 {vr(vRWb+t)}, {vr(vT2)}, 3, {vr(vT0)}")
        A.e(f"v_xor_b32 {vr(vT2)}, {vr(vT5)}, {vr(vT1)}")
        A.e(f"v_lshl_add_u32 {vr(vRWb+4)}, {vr(vT2)}, 3, {vr(vT0)}")
        A.e(f"s_lshl_b32 s{sT0}, s{sRb}, 5")
        A.e(f"v_add_u32 {vr(vT0)}, s{sT0}, {vr(vL15)}"); A.e(f"v_lshlrev_b32 {vr(vT0)}, 7, {vr(vT0)}")
        A.e(f"v_and_b32 {vr(vT1)}, 7, {vr(vLane)}"); A.e(f"v_xor_b32 {vr(vT1)}, {vr(vT1)}, {vr(vG)}")
        A.e(f"v_lshl_add_u32 {vr(vRXb)}, {vr(vT1)}, 4, {vr(vT0)}")
        A.e(f"v_xor_b32 {vr(vRXb+1)}, 64, {vr(vRXb)}")
    def post_setup2():
        A.e(f"s_mov_b32 s{sLog2e}, {LOG2E:#x}"); A.e(f"s_mov_b32 s{sEps}, {EPS:#x}")
        for i in range(40): A.e(f"v_mov_b32 {vr(vAcc+i)}, 0")
        A.e("s_mov_b32 s20, s18"); A.e("s_mov_b32 s21, s19"); A.e(f"s_mov_b32 s22, {WS_BYTES}"); A.e("s_mov_b32 s23, 0x20000")

    def dma_list():
        g = []
        g.append([f"s_add_u32 m0, s{sStageLd}, s{sMX}", f"s_add_u32 s{sSo}, s{sXo}, 8192"])
        g.append([f"buffer_load_dwordx4 {vr(vXA)}, s[8:11], s{sXo} offen lds"])
        g.append([f"s_mul_i32 s{sWo}, s{sXo}, 1728"])
        g.append([f"buffer_load_dwordx4 {vr(vXA)}, s[8:11], s{sSo} offen offset:1024 lds"])
        g.append([f"s_add_u32 m0, s{sStageLd}, s{sMW}", f"s_add_u32 s{sXo}, s{sXo}, 128"])
        g.append([f"buffer_load_dwordx4 {vr(vW)}, s[12:15], s{sWo} offen lds"])
        g.append([f"s_cmp_eq_u32 s{sXo}, 1152", f"s_cselect_b32 s{sXo}, 0, s{sXo}"])
        g.append([f"buffer_load_dwordx4 {vr(vW+1)}, s[12:15], s{sWo} offen offset:1024 lds"])
        g.append([f"s_add_u32 s{sStageLd}, s{sStageLd}, {STAGE}", f"s_cmp_eq_u32 s{sStageLd}, {NST*STAGE}", f"s_cselect_b32 s{sStageLd}, 0, s{sStageLd}"])
        g.append([f"buffer_load_dwordx4 {vr(vW+2)}, s[12:15], s{sWo} offen offset:2048 lds"])
        return g
    def dma_chunk():
        for grp in dma_list():
            for i in grp: A.e(i)

    def addr_list(nt):
        return [f"v_add_u32 {vr(vRX+i)}, s{sStageRd}, {vr(vRXb+i)}" for i in range(2)] + [f"v_add_u32 {vr(vRW+t)}, s{sStageRd}, {vr(vRWb+t)}" for t in range(nt)]
    def set_read_addrs(nt):
        for i in addr_list(nt): A.e(i)

    def read_list(f, kk, nt):
        fx, fw = F[f]
        if "noread" in opts: return []
        l = []
        l.append(f"ds_read_b128 {vr(fx,4)}, {vr(vRX+kk)}")
        l.append(f"ds_read_b64_tr_b16 {vr(fw,2)}, {vr(vRW)} offset:{kk*12288}")
        l.append(f"ds_read_b64_tr_b16 {vr(fw+2,2)}, {vr(vRW)} offset:{kk*12288+1536}")
        l.append(f"ds_read_b128 {vr(fx+4,4)}, {vr(vRX+kk)} offset:2048")
        for t in range(1, nt):
            l.append(f"ds_read_b64_tr_b16 {vr(fw+4*t,2)}, {vr(vRW+t)} offset:{kk*12288}")
            l.append(f"ds_read_b64_tr_b16 {vr(fw+4*t+2,2)}, {vr(vRW+t)} offset:{kk*12288+1536}")
        return l
    def reads(f, kk, nt):
        for i in read_list(f, kk, nt): A.e(i)

    def mfma_list(f, nt, isq):
        fx, fw = F[f]
        l = []
        for t in range(nt):
            for sg in range(2):
                d = vr(vAcc + (t*2+sg)*4, 4)
                x = vr(fx+4*sg, 4); w = vr(fw+4*t, 4)
                if isq: l.append(f"v_mfma_f32_16x16x32_bf16 {d}, {w}, {x}, {d}")
                else:   l.append(f"v_mfma_f32_16x16x32_bf16 {d}, {x}, {w}, {d}")
        return l

    def step(nt, isq, f, slots):
        ms = mfma_list(f, nt, isq)
        if "nomfma" in opts: ms = [None]*len(ms)
        nread = 2 + 2*nt
        issued = 0
        lastw = None
        for m in range(len(ms)):
            t = m // 2; sg = m % 2
            need = 3 if (t == 0 and sg == 0) else (4 if t == 0 else 4 + 2*t)
            if "noread" not in opts and (lastw is None or need > lastw):
                allowed = min(15, (nread - need) + issued)
                A.e(f"s_waitcnt lgkmcnt({allowed})"); lastw = need
            if ms[m]: A.e(ms[m])
            for kind, ins in slots[m]:
                for i in ins: A.e(i)
                if kind == 'r': issued += 1

    def mainloop(tag, nt, isq):
        nr = 2 + 2*nt
        A.e(f"s_mov_b32 s{sStageRd}, 0")
        set_read_addrs(nt)
        A.e(f"s_waitcnt vmcnt({5*(NST-1)})")
        A.e("s_barrier")
        reads(0, 0, nt)
        A.e(f"s_mov_b32 s{sIt}, 0")
        dl = dma_list() if "nodma" not in opts else []
        nB = 4; dB = dl[:nB]; dA = dl[nB:]
        def stepA(with_dma, adv=True):
            n = 2*nt
            slots = [[] for _ in range(n)]
            rl = read_list(1, 1, nt)
            for k, i in enumerate(rl): slots[k // 2].append(('r', [i]))
            if with_dma:
                pos = [0, 1, 2, 3, 4, 5]
                for k, g in enumerate(dA): slots[pos[k]].append(('x', g))
            if adv:
                last_r = (len(rl) - 1) // 2 if rl else 0
                slots[last_r].append(('x', [f"s_add_u32 s{sStageRd}, s{sStageRd}, {STAGE}", f"s_cmp_eq_u32 s{sStageRd}, {NST*STAGE}", f"s_cselect_b32 s{sStageRd}, 0, s{sStageRd}"]))
                al = addr_list(nt)
                rem = list(range(last_r + 1, n))
                for k, i in enumerate(al): slots[rem[min(k * len(rem) // len(al), len(rem) - 1)]].append(('x', [i]))
            step(nt, isq, 0, slots)
        def stepB(wait, with_dma, last):
            ms = mfma_list(1, nt, isq)
            if "nomfma" in opts: ms = [None]*len(ms)
            if "noread" not in opts: A.e("s_waitcnt lgkmcnt(0)")
            npre = NPRE
            for m in range(npre):
                if ms[m]: A.e(ms[m])
            if last:
                for m in range(npre, len(ms)):
                    if ms[m]: A.e(ms[m])
                return
            A.e(wait); A.e("s_barrier")
            n = len(ms) - npre
            slots = [[] for _ in range(n)]
            rl = read_list(0, 0, nt)
            per = -(-len(rl) // n) if rl else 0
            for k, i in enumerate(rl): slots[min(k // max(per, 2), n - 1)].append(i)
            if with_dma:
                pos = [0, 1, 2, min(3, n-1)]
                for k, g in enumerate(dB): slots[pos[k]] += g
            for m in range(n):
                if ms[npre+m]: A.e(ms[npre+m])
                for i in slots[m]: A.e(i)
        D = NST
        nd = 9 - D
        stepA(False)
        A.label(f"{tag}_loop")
        stepB(f"s_waitcnt vmcnt({5*(D-2)})", True, False)
        stepA(True)
        A.e(f"s_add_u32 s{sIt}, s{sIt}, 1"); A.e(f"s_cmp_lt_u32 s{sIt}, {nd}"); A.e(f"s_cbranch_scc1 {tag}_loop")
        for c in range(nd, 8):
            left = 8 - (c + 1)
            stepB(f"s_waitcnt vmcnt({5*left})", False, False)
            stepA(False, adv=(c < 7))
        stepB(None, False, True)

    def phi(r, tmp):
        A.e(f"v_mul_f32 {vr(tmp)}, s{sLog2e}, {vr(r)}")
        A.e(f"v_exp_f32_e64 {vr(tmp)}, {vr(tmp)} clamp")
        A.e(f"v_max_f32 {vr(r)}, 0, {vr(r)}")
        A.e(f"v_add_f32 {vr(r)}, s{sEps}, {vr(r)}")
        A.e(f"v_add_f32 {vr(r)}, {vr(r)}, {vr(tmp)}")

    dma_chunk()
    if stamps: A.e(f"s_memtime s[{sSt+2}:{sSt+3}]")
    post_setup()
    dma_chunk()
    post_setup2()
    for _ in range(NST-2): dma_chunk()
    A.e(f"s_cmp_ge_u32 s{sJ}, 16"); A.e(f"s_cbranch_scc1 {name}_q")
    A.e(f"s_cmp_eq_u32 s{sHalf}, 0"); A.e(f"s_cbranch_scc0 {name}_kv1")
    def ml(tag, nt, isq):
        mainloop(tag, nt, isq)
        if "twice" in opts:
            A.e("s_barrier")
            A.e(f"s_memtime s[{sSt+2}:{sSt+3}]")
            A.e(f"s_mov_b32 s{sStageLd}, 0")
            for _ in range(NST): dma_chunk()
            mainloop(tag + "b", nt, isq)
    ml(f"{name}_kv0", 5, False)
    A.e(f"s_branch {name}_kvepi")
    A.label(f"{name}_kv1")
    ml(f"{name}_kv1l", 4, False)
    A.label(f"{name}_kvepi")
    if stamps: A.e(f"s_memtime s[{sSt+4}:{sSt+5}]")
    A.e(f"s_lshl_b32 s{sT0}, s{sG}, 2"); A.e(f"v_mov_b32 {vr(vFlagA)}, s{sT0}")
    A.e(f"global_load_dword {vr(vFlag)}, {vr(vFlagA)}, s[16:17] sc1")
    STG = 40960
    A.e(f"v_mov_b32 {vr(vP+0)}, 0"); A.e(f"v_mov_b32 {vr(vP+1)}, 0"); A.e(f"v_mov_b32 {vr(vP+2)}, 0"); A.e(f"v_mov_b32 {vr(vP+3)}, 0")
    A.e(f"v_lshlrev_b32 {vr(vT0)}, 4, v0")
    A.e(f"v_cmp_gt_u32 vcc, 380, v0")
    A.e(f"s_and_saveexec_b64 s[{sExec}:{sExec+1}], vcc")
    A.e(f"ds_write_b128 {vr(vT0)}, {vr(vP,4)} offset:{STG}")
    A.e(f"s_mov_b64 exec, s[{sExec}:{sExec+1}]")
    A.nop(4)
    for t in range(2):
        for i in range(8):
            phi(vAcc + t*8 + i, vT0 + (i & 3))
    A.e(f"s_cmp_eq_u32 s{sHalf}, 0"); A.e(f"s_cbranch_scc0 {name}_not8")
    A.e(f"v_cmp_gt_u32 s[{sM0}:{sM0+1}], 8, {vr(vL15)}")
    for i in range(8):
        r = vAcc + 32 + i
        A.e(f"v_mov_b32 {vr(vT4)}, {vr(r)}")
        phi(r, vT0 + (i & 3))
        A.e(f"v_cndmask_b32 {vr(r)}, {vr(vT4)}, {vr(r)}, s[{sM0}:{sM0+1}]")
    A.label(f"{name}_not8")
    A.e(f"s_lshl_b32 s{sT0}, s{sHalf}, 1"); A.e(f"s_lshl_b32 s{sT0}, s{sT0}, 2"); A.e(f"s_add_u32 s{sT0}, s{sT0}, s{sRb}"); A.e(f"s_lshl_b32 s{sT0}, s{sT0}, 10")
    A.e(f"v_lshlrev_b32 {vr(vT0)}, 4, {vr(vLane)}"); A.e(f"v_add_u32 {vr(vT0)}, s{sT0}, {vr(vT0)}")
    exbase = [0, 1, 4, 5]
    for t in range(4):
        p = vP + 4*t
        for h in range(4):
            A.e(f"v_cvt_pk_bf16_f32 {vr(p+h)}, {vr(vAcc+t*8+2*h)}, {vr(vAcc+t*8+2*h+1)}")
        A.e(f"ds_write_b128 {vr(vT0)}, {vr(p,4)} offset:{exbase[t]*4096}")
    A.e(f"s_cmp_eq_u32 s{sHalf}, 0"); A.e(f"s_cbranch_scc0 {name}_not8b")
    p = vP + 16
    for h in range(4):
        A.e(f"v_cvt_pk_bf16_f32 {vr(p+h)}, {vr(vAcc+32+2*h)}, {vr(vAcc+32+2*h+1)}")
    A.e(f"ds_write_b128 {vr(vT0)}, {vr(p,4)} offset:{8*4096}")
    A.label(f"{name}_not8b")
    for i in range(4): A.e(f"v_mov_b32 {vr(vOnes+i)}, 0x3f803f80")
    A.e("s_waitcnt lgkmcnt(0)")
    A.e("s_barrier")
    fa = F[0][0]
    assert F[0][1] == fa + 8 and F[1][0] == fa + 28
    TA = fa; TB = fa + 16; T8 = fa + 32
    A.e(f"v_lshlrev_b32 {vr(vT0)}, 4, {vr(vLane)}")
    A.e(f"s_lshl_b32 s{sT0}, s{sRb}, 12")
    A.e(f"v_add_u32 {vr(vT1)}, s{sT0}, {vr(vT0)}")
    for rb in range(4): A.e(f"ds_read_b128 {vr(T8+4*rb,4)}, {vr(vT0)} offset:{8*4096+rb*1024}")
    for rb in range(4): A.e(f"ds_read_b128 {vr(TB+4*rb,4)}, {vr(vT1)} offset:{4*4096+rb*1024}")
    A.e(f"s_mul_i32 s{sT1}, s{sRb}, 1520"); A.e(f"s_add_u32 s{sT1}, s{sT1}, {STG}")
    A.e(f"s_and_b32 s{sX}, s{sRb}, 1")
    A.e(f"s_lshr_b32 s{sT2}, s{sRb}, 1"); A.e(f"s_lshl_b32 s{sT0}, s{sT2}, 2"); A.e(f"s_lshl_b32 s{sSo}, s{sX}, 1"); A.e(f"s_add_u32 s{sT0}, s{sT0}, s{sSo}"); A.e(f"s_add_u32 s{sT0}, s{sT0}, 8")
    A.e(f"v_subrev_u32 {vr(vT3)}, s{sT0}, {vr(vL15)}")
    A.e(f"v_cmp_gt_u32 s[{sM0}:{sM0+1}], 2, {vr(vT3)}")
    A.e(f"v_cmp_eq_u32 s[{sM1}:{sM1+1}], 0, {vr(vL15)}")
    acc0 = vAcc; acc1 = vAcc + 4; acc2 = vAcc + 8
    A.e(f"s_cmp_eq_u32 s{sHalf}, 0"); A.e(f"s_cbranch_scc0 {name}_part1")
    for rb in range(4): A.e(f"ds_read_b128 {vr(TA+4*rb,4)}, {vr(vT1)} offset:{rb*1024}")
    A.e("s_waitcnt lgkmcnt(0)")
    for rb in range(4):
        c = "0" if rb == 0 else None
        A.e(f"v_mfma_f32_16x16x32_bf16 {vr(acc0,4)}, {vr(TA+4*rb,4)}, {vr(TB+4*rb,4)}, {c or vr(acc0,4)}")
        A.e(f"v_mfma_f32_16x16x32_bf16 {vr(acc1,4)}, {vr(TA+4*rb,4)}, {vr(T8+4*rb,4)}, {c or vr(acc1,4)}")
        A.e(f"v_mfma_f32_16x16x32_bf16 {vr(acc2,4)}, {vr(TA+4*rb,4)}, {vr(vOnes,4)}, {c or vr(acc2,4)}")
    A.e(f"s_lshl_b32 s{sT2}, s{sX}, 4"); A.e(f"s_add_u32 s{sT2}, s{sT2}, s{sT1}")
    A.e(f"v_lshlrev_b32 {vr(vT4)}, 4, {vr(vG)}"); A.e(f"v_add_u32 {vr(vT4)}, s{sT2}, {vr(vT4)}")
    A.e(f"v_mul_u32_u24 {vr(vT0)}, 80, {vr(vL15)}"); A.e(f"v_add_u32 {vr(vT0)}, {vr(vT0)}, {vr(vT4)}")
    A.e(f"v_mul_u32_u24 {vr(vT1)}, 80, {vr(vT3)}"); A.e(f"v_add_u32 {vr(vT1)}, {vr(vT1)}, {vr(vT4)}")
    A.nop(8)
    A.e(f"ds_write_b128 {vr(vT0)}, {vr(acc0,4)}")
    A.e(f"s_mov_b64 s[{sExec}:{sExec+1}], exec")
    A.e(f"s_mov_b64 exec, s[{sM0}:{sM0+1}]")
    A.e(f"ds_write_b128 {vr(vT1)}, {vr(acc1,4)} offset:{16*80}")
    A.e(f"s_mov_b64 exec, s[{sM1}:{sM1+1}]")
    A.e(f"ds_write_b128 {vr(vT4)}, {vr(acc2,4)} offset:{18*80}")
    A.e(f"s_mov_b64 exec, s[{sExec}:{sExec+1}]")
    A.e(f"s_branch {name}_kvdone")
    A.label(f"{name}_part1")
    A.e("s_waitcnt lgkmcnt(0)")
    for rb in range(4):
        c = "0" if rb == 0 else None
        A.e(f"v_mfma_f32_16x16x32_bf16 {vr(acc0,4)}, {vr(T8+4*rb,4)}, {vr(TB+4*rb,4)}, {c or vr(acc0,4)}")
        A.e(f"v_mfma_f32_16x16x32_bf16 {vr(acc1,4)}, {vr(T8+4*rb,4)}, {vr(T8+4*rb,4)}, {c or vr(acc1,4)}")
        A.e(f"v_mfma_f32_16x16x32_bf16 {vr(acc2,4)}, {vr(T8+4*rb,4)}, {vr(vOnes,4)}, {c or vr(acc2,4)}")
    A.e(f"s_cmp_eq_u32 s{sX}, 0"); A.e(f"s_cselect_b32 s{sT2}, 64, 8"); A.e(f"s_add_u32 s{sT2}, s{sT2}, s{sT1}")
    A.e(f"v_mul_u32_u24 {vr(vT0)}, 80, {vr(vL15)}"); A.e(f"v_add_u32 {vr(vT0)}, s{sT2}, {vr(vT0)}")
    A.e(f"v_mul_u32_u24 {vr(vT1)}, 80, {vr(vT3)}"); A.e(f"v_add_u32 {vr(vT1)}, s{sT2}, {vr(vT1)}")
    A.e(f"v_mov_b32 {vr(vT4)}, s{sT2}")
    A.e(f"s_lshr_b32 s{sT0}, s{sRb}, 1")
    A.e(f"v_cmp_eq_u32 vcc, s{sT0}, {vr(vG)}")
    A.nop(6)
    A.e(f"s_cmp_eq_u32 s{sX}, 0"); A.e(f"s_cbranch_scc1 {name}_xe")
    for acc in (acc0, acc1, acc2):
        A.e(f"v_mov_b32 {vr(acc)}, {vr(acc+2)}"); A.e(f"v_mov_b32 {vr(acc+1)}, {vr(acc+3)}")
    A.label(f"{name}_xe")
    A.e(f"s_mov_b64 s[{sExec}:{sExec+1}], exec")
    A.e(f"s_and_b64 s[{sM0}:{sM0+1}], s[{sM0}:{sM0+1}], vcc")
    A.e(f"s_and_b64 s[{sM1}:{sM1+1}], s[{sM1}:{sM1+1}], vcc")
    A.e(f"s_mov_b64 exec, vcc")
    A.e(f"ds_write_b64 {vr(vT0)}, {vr(acc0,2)}")
    A.e(f"s_mov_b64 exec, s[{sM0}:{sM0+1}]")
    A.e(f"ds_write_b64 {vr(vT1)}, {vr(acc1,2)} offset:{16*80}")
    A.e(f"s_mov_b64 exec, s[{sM1}:{sM1+1}]")
    A.e(f"ds_write_b64 {vr(vT4)}, {vr(acc2,2)} offset:{18*80}")
    A.e(f"s_mov_b64 exec, s[{sExec}:{sExec+1}]")
    A.label(f"{name}_kvdone")
    A.e("s_waitcnt lgkmcnt(0)")
    A.e("s_barrier")
    A.e(f"v_lshlrev_b32 {vr(vT0)}, 2, v0")
    for i in range(3): A.e(f"ds_read_b32 {vr(vP+i)}, {vr(vT0)} offset:{STG + 2048*i}")
    A.e(f"s_mul_i32 s{sT0}, s{sG}, 6080"); A.e(f"s_add_u32 s{sT0}, s{sT0}, {KVS_OFF}")
    A.e(f"v_add_u32 {vr(vT1)}, s{sT0}, {vr(vT0)}")
    A.e(f"v_add_u32 {vr(vT2)}, 2048, {vr(vT1)}"); A.e(f"v_add_u32 {vr(vT3)}, 4096, {vr(vT1)}")
    A.e(f"v_mov_b32 {vr(vT4)}, {1520-1024}")
    A.e(f"v_cmp_lt_u32 s[{sM0}:{sM0+1}], v0, {vr(vT4)}")
    A.label(f"{name}_poll")
    A.e("s_waitcnt vmcnt(0)")
    A.e(f"v_readfirstlane_b32 s{sT0}, {vr(vFlag)}")
    A.e("s_nop 3")
    A.e(f"s_cmp_lg_u32 s{sT0}, 0"); A.e(f"s_cbranch_scc1 {name}_go")
    A.e(f"global_load_dword {vr(vFlag)}, {vr(vFlagA)}, s[16:17] sc1")
    A.e(f"s_branch {name}_poll")
    A.label(f"{name}_go")
    A.e("s_waitcnt lgkmcnt(0)")
    A.e(f"global_atomic_add_f32 {vr(vT1)}, {vr(vP)}, s[18:19]")
    A.e(f"global_atomic_add_f32 {vr(vT2)}, {vr(vP+1)}, s[18:19]")
    A.e(f"s_mov_b64 exec, s[{sM0}:{sM0+1}]")
    A.e(f"s_cbranch_execz {name}_fin")
    A.e(f"global_atomic_add_f32 {vr(vT3)}, {vr(vP+2)}, s[18:19]")
    A.e(f"s_branch {name}_fin")
    A.label(f"{name}_q")
    A.e(f"s_cmp_eq_u32 s{sHalf}, 0"); A.e(f"s_cbranch_scc0 {name}_q1")
    ml(f"{name}_q0", 5, True)
    A.e(f"s_branch {name}_qepi")
    A.label(f"{name}_q1")
    ml(f"{name}_q1l", 4, True)
    A.label(f"{name}_qepi")
    if stamps: A.e(f"s_memtime s[{sSt+4}:{sSt+5}]")
    A.e(f"s_lshl_b32 s{sT0}, s{sMt}, 3"); A.e(f"s_lshl_b32 s{sT1}, s{sRb}, 1"); A.e(f"s_add_u32 s{sT0}, s{sT0}, s{sT1}"); A.e(f"s_mul_i32 s{sT0}, s{sT0}, {PQ_STILE}")
    A.e(f"s_lshl_b32 s{sT1}, s{sG}, 2"); A.e(f"s_lshl_b32 s{sT2}, s{sHalf}, 1"); A.e(f"s_add_u32 s{sT1}, s{sT1}, s{sT2}"); A.e(f"s_lshl_b32 s{sT1}, s{sT1}, 10")
    A.e(f"s_add_u32 s{sT1}, s{sT1}, s{sT0}")
    A.e(f"v_lshlrev_b32 {vr(vT4)}, 4, {vr(vLane)}"); A.e(f"v_add_u32 {vr(vT4)}, s{sT1}, {vr(vT4)}")
    A.e(f"s_lshl_b32 s{sT1}, s{sG}, 9"); A.e(f"s_add_u32 s{sT1}, s{sT1}, s{sT0}"); A.e(f"s_add_u32 s{sT1}, s{sT1}, 16384")
    A.e(f"v_lshlrev_b32 {vr(vT5)}, 3, {vr(vLane)}"); A.e(f"v_add_u32 {vr(vT5)}, s{sT1}, {vr(vT5)}")
    A.e(f"s_mov_b32 s{sSo}, {PQ_STILE}")
    A.nop(4)
    k = 0
    for i in range(2):
        for sg in range(2):
            p = vP + 4*(k % 4); k += 1
            for tt in range(2):
                t = 2*i + tt
                for r in range(4): phi(vAcc + (t*2+sg)*4 + r, vT0 + r)
                for h in range(2):
                    A.e(f"v_cvt_pk_bf16_f32 {vr(p+2*tt+h)}, {vr(vAcc+(t*2+sg)*4+2*h)}, {vr(vAcc+(t*2+sg)*4+2*h+1)}")
            so = "0" if sg == 0 else f"s{sSo}"
            A.e(f"buffer_store_dwordx4 {vr(p,4)}, {vr(vT4)}, s[20:23], {so} offen offset:{i*1024}")
    A.e(f"s_cmp_eq_u32 s{sHalf}, 0"); A.e(f"s_cbranch_scc0 {name}_fin")
    for sg in range(2):
        p = vP + 16 + 2*sg
        for r in range(4): phi(vAcc + (8+sg)*4 + r, vT0 + r)
        for h in range(2):
            A.e(f"v_cvt_pk_bf16_f32 {vr(p+h)}, {vr(vAcc+(8+sg)*4+2*h)}, {vr(vAcc+(8+sg)*4+2*h+1)}")
        so = "0" if sg == 0 else f"s{sSo}"
        A.e(f"buffer_store_dwordx2 {vr(p,2)}, {vr(vT5)}, s[20:23], {so} offen")
    A.e(f"s_branch {name}_fin")
    A.label(f"{name}_zero")
    A.e("s_waitcnt lgkmcnt(0)")
    A.e(f"s_mul_i32 s{sT0}, s2, 6080"); A.e(f"s_add_u32 s{sT0}, s{sT0}, {KVS_OFF}")
    A.e(f"v_lshlrev_b32 {vr(vT0)}, 4, v0"); A.e(f"v_add_u32 {vr(vT0)}, s{sT0}, {vr(vT0)}")
    for i in range(4): A.e(f"v_mov_b32 {vr(vP+i)}, 0")
    A.e(f"v_mov_b32 {vr(vT1)}, 380")
    A.e(f"v_cmp_lt_u32 vcc, v0, {vr(vT1)}")
    A.e(f"s_and_saveexec_b64 s[{sExec}:{sExec+1}], vcc")
    A.e(f"s_cbranch_execz {name}_zs")
    A.e(f"global_store_dwordx4 {vr(vT0)}, {vr(vP,4)}, s[18:19] sc1")
    A.label(f"{name}_zs")
    A.e(f"s_mov_b64 exec, s[{sExec}:{sExec+1}]")
    A.e("s_waitcnt vmcnt(0)")
    A.e("s_barrier")
    A.e(f"s_cmp_eq_u32 s{sWave}, 0"); A.e(f"s_cbranch_scc0 {name}_end")
    A.e(f"s_lshl_b32 s{sT0}, s2, 2"); A.e(f"v_mov_b32 {vr(vT0)}, s{sT0}"); A.e(f"v_mov_b32 {vr(vT1)}, 1")
    A.e(f"v_cmp_eq_u32 vcc, 0, {vr(vLane)}")
    A.e(f"s_and_saveexec_b64 s[{sExec}:{sExec+1}], vcc")
    A.e(f"global_store_dword {vr(vT0)}, {vr(vT1)}, s[16:17] sc1")
    A.e(f"s_branch {name}_end")
    A.label(f"{name}_fin")
    if stamps:
        A.e("s_mov_b64 exec, -1")
        A.e("s_waitcnt vmcnt(0)")
        A.e(f"s_memtime s[{sSt+6}:{sSt+7}]")
        A.e(f"s_memrealtime s[{sSt+8}:{sSt+9}]")
        A.e("s_waitcnt lgkmcnt(0)")
        for i in (2, 4, 6): A.e(f"s_sub_u32 s{sSt+i}, s{sSt+i}, s{sSt}")
        A.e(f"s_lshl_b32 s{sT0}, s2, 3"); A.e(f"s_add_u32 s{sT0}, s{sT0}, s{sWave}"); A.e(f"s_lshl_b32 s{sT0}, s{sT0}, 4"); A.e(f"s_add_u32 s{sT0}, s{sT0}, 0x400000")
        A.e(f"v_mov_b32 {vr(vP)}, s{sSt+2}"); A.e(f"v_mov_b32 {vr(vP+1)}, s{sSt+4}"); A.e(f"v_mov_b32 {vr(vP+2)}, s{sSt+6}"); A.e(f"v_mov_b32 {vr(vP+3)}, s{sSt+8}")
        A.e(f"v_mov_b32 {vr(vT0)}, s{sT0}")
        A.e(f"v_cmp_eq_u32 vcc, 0, {vr(vLane)}"); A.e(f"s_and_saveexec_b64 s[{sExec}:{sExec+1}], vcc")
        A.e(f"global_store_dwordx4 {vr(vT0)}, {vr(vP,4)}, s[18:19]")
    A.label(f"{name}_end")
    A.e("s_endpgm")
    return nv

def kernel_header(A, name):
    A.e(f".globl {name}"); A.L.append(".p2align 8"); A.L.append(f".type {name},@function")

def kernel_desc(A, name, nvgpr, nsgpr, accum=None, nagpr=0):
    acc = accum if accum else (nvgpr + 3)//4*4
    tot = acc + nagpr if nagpr else nvgpr
    A.L.append(f".amdhsa_kernel {name}")
    A.L.append(f"  .amdhsa_next_free_vgpr {tot}")
    A.L.append(f"  .amdhsa_next_free_sgpr {nsgpr}")
    A.L.append(f"  .amdhsa_accum_offset {acc}")
    A.L.append("  .amdhsa_group_segment_fixed_size 0")
    A.L.append("  .amdhsa_kernarg_size 48")
    A.L.append("  .amdhsa_user_sgpr_count 2")
    A.L.append("  .amdhsa_user_sgpr_kernarg_segment_ptr 1")
    A.L.append("  .amdhsa_system_sgpr_workgroup_id_x 1")
    A.L.append(".end_amdhsa_kernel")

if __name__ == "__main__":
    import sys
    rot = "norot" not in sys.argv
    A = Asm()
    A.L.append("; @launch kernel=k1_kernel grid=(200,1,1) block=(512,1,1) lds=%d" % (NST*STAGE))
    A.L.append('.amdgcn_target "amdgcn-amd-amdhsa--gfx950"')
    A.L.append(".text")
    kernel_header(A, "k1_kernel")
    nv = gen_k1(A, "k1_kernel", rot=rot, stamps=True, opts=sys.argv[1:])
    A.L.append('.section .rodata,"a"'); A.L.append(".p2align 6")
    kernel_desc(A, "k1_kernel", nv, 80)
    print(A.text())
```

```python
from asmlib import *
from k1 import PQ_STILE, KVS_OFF, WS_BYTES, EPS
import os

WO_LDS = 0
KVI = 110592
XB = KVI + 25600 + 512
K2_LDS = XB + 24*1024

def gen_k2(A: Asm, name, stamps=False, opts=()):
    sWave = 24; sXcd = 25; sJ = 26; sMt = 27; sNt = 28; sT0 = 29; sT1 = 30; sT2 = 31
    sSp = 32; sKh = 33; sSo = 34; sM0 = 35
    sExec = 40; sMk = 42
    sG2 = 44
    sSt = 60
    V = VAlloc(1, 256)
    vLane = V.get("lane"); vT = [V.get(f"t{i}") for i in range(8)]
    vL15 = V.get("l15"); vG = V.get("g"); vR = V.get("r"); vC = V.get("c")
    vWA = V.get("wa", 3)
    vB = V.get("B", 2); vE = V.get("E", 2)
    vM0 = V.get("M0"); vM1A = V.get("M1A"); vM1B = V.get("M1B")
    vC0 = V.get("C0", 4); vC1A = V.get("C1A", 4); vC1B = V.get("C1B", 4)
    vEpsC = V.get("epsc", 4, 4)
    vCb = V.get("cb", 8, 2)
    vX = V.get("X", 128, 4)
    vO = V.get("o", 48, 4)
    vEx = V.get("ex", 16, 2)
    vOf = V.get("of", 16, 4)
    vRc = vCb
    nv = V.n
    aAcc = 0
    aKV = 48
    aWO = 80
    na = 128
    def X(sg, p): return vX + (sg*8 + p)*8

    A.label(name)
    A.e("s_cmp_ge_u32 s2, 192"); A.e(f"s_cbranch_scc1 {name}_end")
    if stamps: A.e(f"s_memtime s[{sSt}:{sSt+1}]")
    A.e("s_load_dwordx4 s[4:7], s[0:1], 16")
    A.e("s_load_dwordx2 s[18:19], s[0:1], 40")
    A.e(f"v_lshrrev_b32 {vr(vT[0])}, 6, v0"); A.e(f"v_and_b32 {vr(vLane)}, 63, v0")
    A.e(f"s_and_b32 s{sXcd}, s2, 7")
    A.e(f"v_readfirstlane_b32 s{sWave}, {vr(vT[0])}")
    A.e(f"s_lshr_b32 s{sJ}, s2, 3")
    A.e(f"s_and_b32 s{sT0}, s{sJ}, 3"); A.e(f"s_lshl_b32 s{sMt}, s{sXcd}, 2"); A.e(f"s_add_u32 s{sMt}, s{sMt}, s{sT0}")
    A.e(f"s_lshr_b32 s{sNt}, s{sJ}, 2")
    A.e(f"s_and_b32 s{sSp}, s{sWave}, 1"); A.e(f"s_lshr_b32 s{sKh}, s{sWave}, 1")
    A.e(f"v_lshlrev_b32 {vr(vT[1])}, 4, v0"); A.e(f"v_add_u32 {vr(vT[1])}, {KVS_OFF}, {vr(vT[1])}")
    A.e(f"s_lshl_b32 s{sT0}, s{sMt}, 2"); A.e(f"s_lshl_b32 s{sT1}, s{sSp}, 1"); A.e(f"s_add_u32 s{sT0}, s{sT0}, s{sT1}"); A.e(f"s_mul_i32 s{sT0}, s{sT0}, {PQ_STILE}")
    A.e(f"s_lshl_b32 s{sT1}, s{sKh}, 13"); A.e(f"s_add_u32 s{sT1}, s{sT1}, s{sT0}")
    A.e(f"v_lshlrev_b32 {vr(vT[2])}, 4, {vr(vLane)}"); A.e(f"v_add_u32 {vr(vT[2])}, s{sT1}, {vr(vT[2])}")
    A.e(f"s_lshl_b32 s{sT1}, s{sKh}, 10"); A.e(f"s_add_u32 s{sT1}, s{sT1}, s{sT0}"); A.e(f"s_add_u32 s{sT1}, s{sT1}, 16384")
    A.e(f"v_lshlrev_b32 {vr(vT[3])}, 3, {vr(vLane)}"); A.e(f"v_add_u32 {vr(vT[3])}, s{sT1}, {vr(vT[3])}")
    A.e(f"s_mul_i32 s{sT2}, s{sNt}, 192")
    for i in range(3):
        A.e(f"v_add_u32 {vr(vT[4])}, {64*i}, {vr(vLane)}")
        A.e(f"v_mul_u32_u24 {vr(vT[5])}, 5462, {vr(vT[4])}"); A.e(f"v_lshrrev_b32 {vr(vT[5])}, 16, {vr(vT[5])}")
        A.e(f"v_mul_u32_u24 {vr(vT[6])}, 12, {vr(vT[5])}"); A.e(f"v_sub_u32 {vr(vT[6])}, {vr(vT[4])}, {vr(vT[6])}")
        A.e(f"v_lshrrev_b32 {vr(vT[7])}, 1, {vr(vT[5])}"); A.e(f"v_and_b32 {vr(vT[7])}, 2, {vr(vT[7])}")
        A.e(f"v_xor_b32 {vr(vT[6])}, {vr(vT[6])}, {vr(vT[7])}")
        A.e(f"v_mul_u32_u24 {vr(vT[5])}, 1152, {vr(vT[5])}"); A.e(f"v_lshl_add_u32 {vr(vT[5])}, {vr(vT[6])}, 4, {vr(vT[5])}")
        A.e(f"v_add_u32 {vr(vWA+i)}, s{sT2}, {vr(vT[5])}")
        if i: A.e(f"v_subrev_u32 {vr(vWA+i)}, {1024*i}, {vr(vWA+i)}")
    A.e("s_mov_b32 s10, 663552"); A.e("s_mov_b32 s11, 0x20000")
    A.e(f"s_mov_b32 s14, {2048*1152}"); A.e("s_mov_b32 s15, 0x20000")
    A.e(f"s_mov_b32 s22, {WS_BYTES}"); A.e("s_mov_b32 s23, 0x20000")
    A.e("s_waitcnt lgkmcnt(0)")
    A.e("s_mov_b32 s8, s4"); A.e("s_mov_b32 s9, s5"); A.e("s_mov_b32 s12, s6"); A.e("s_mov_b32 s13, s7")
    A.e("s_mov_b32 s20, s18"); A.e("s_mov_b32 s21, s19")
    for i in range(12):
        A.e(f"s_movk_i32 s{sSo}, {4096*i}") if 4096*i < 32768 else A.e(f"s_mov_b32 s{sSo}, {4096*i}")
        A.e(f"buffer_load_dwordx4 {vr(vO+4*i,4)}, {vr(vT[1])}, s[20:23], s{sSo} offen")
    for sg in range(2):
        for jj in range(2):
            A.e(f"s_mov_b32 s{sSo}, {sg*PQ_STILE}")
            A.e(f"buffer_load_dwordx2 {vr(vCb+(sg*2+jj)*2,2)}, {vr(vT[3])}, s[20:23], s{sSo} offen offset:{jj*512}")
    A.e(f"s_mul_i32 s{sT0}, s{sKh}, 288"); A.e(f"s_lshl_b32 s{sT1}, s{sSp}, 4"); A.e(f"s_add_u32 s{sT0}, s{sT0}, s{sT1}")
    A.e(f"s_mul_i32 s{sM0}, s{sT0}, 192"); A.e(f"s_mul_i32 s{sT1}, s{sT0}, 1152")
    xl = [(sg, p) for p in range(8) for sg in range(2)]
    xi = 0
    for t in range(9):
        for _ in range(2):
            if xi < 16:
                sg, p = xl[xi]; xi += 1
                A.e(f"s_mov_b32 s{sSo}, {sg*PQ_STILE + p*1024}")
                A.e(f"buffer_load_dwordx4 {vr(X(sg,p)+2,4)}, {vr(vT[2])}, s[20:23], s{sSo} offen")
        A.e(f"s_mov_b32 m0, s{sM0}")
        A.e(f"s_add_u32 s{sM0}, s{sM0}, {32*192}")
        A.e(f"buffer_load_dwordx4 {vr(vWA)}, s[8:11], s{sT1} offen lds")
        A.e(f"buffer_load_dwordx4 {vr(vWA+1)}, s[8:11], s{sT1} offen offset:1024 lds")
        A.e(f"buffer_load_dwordx4 {vr(vWA+2)}, s[8:11], s{sT1} offen offset:2048 lds")
        A.e(f"s_add_u32 s{sT1}, s{sT1}, {32*1152}")
    if stamps: A.e(f"s_memtime s[{sSt+2}:{sSt+3}]")
    A.e(f"v_and_b32 {vr(vL15)}, 15, {vr(vLane)}"); A.e(f"v_lshrrev_b32 {vr(vG)}, 4, {vr(vLane)}")
    A.e(f"v_bfe_u32 {vr(vR)}, {vr(vLane)}, 2, 2"); A.e(f"v_and_b32 {vr(vC)}, 3, {vr(vLane)}")
    A.e(f"s_mul_i32 s{sT0}, s{sKh}, 55296")
    A.e(f"v_lshl_add_u32 {vr(vT[0])}, {vr(vG)}, 2, {vr(vR)}"); A.e(f"v_mul_u32_u24 {vr(vT[0])}, 192, {vr(vT[0])}")
    A.e(f"v_lshl_add_u32 {vr(vT[0])}, {vr(vC)}, 3, {vr(vT[0])}"); A.e(f"v_add_u32 {vr(vT[0])}, s{sT0}, {vr(vT[0])}")
    A.e(f"v_and_b32 {vr(vT[1])}, 1, {vr(vG)}")
    A.e(f"v_lshl_add_u32 {vr(vB)}, {vr(vT[1])}, 5, {vr(vT[0])}")
    A.e(f"v_xor_b32 {vr(vT[1])}, 1, {vr(vT[1])}"); A.e(f"v_lshl_add_u32 {vr(vB+1)}, {vr(vT[1])}, 5, {vr(vT[0])}")
    A.e(f"v_mul_u32_u24 {vr(vT[0])}, 36, {vr(vR)}"); A.e(f"v_add3_u32 {vr(vT[0])}, {vr(vT[0])}, {vr(vG)}, 16"); A.e(f"v_mul_u32_u24 {vr(vT[0])}, 192, {vr(vT[0])}")
    A.e(f"v_lshl_add_u32 {vr(vT[0])}, {vr(vC)}, 3, {vr(vT[0])}"); A.e(f"v_add_u32 {vr(vT[0])}, s{sT0}, {vr(vT[0])}")
    A.e(f"v_and_b32 {vr(vT[1])}, 1, {vr(vR)}")
    A.e(f"v_lshl_add_u32 {vr(vE)}, {vr(vT[1])}, 5, {vr(vT[0])}")
    A.e(f"v_xor_b32 {vr(vT[1])}, 1, {vr(vT[1])}"); A.e(f"v_lshl_add_u32 {vr(vE+1)}, {vr(vT[1])}, 5, {vr(vT[0])}")
    A.e(f"s_mul_i32 s{sT0}, s{sKh}, 12800"); A.e(f"s_add_u32 s{sT0}, s{sT0}, {KVI}")
    q = vT[0]; gp = vT[1]; sa = vT[2]; sb = vT[3]
    A.e(f"v_and_b32 {vr(q)}, 3, {vr(vL15)}"); A.e(f"v_lshrrev_b32 {vr(gp)}, 2, {vr(vL15)}")
    A.e(f"v_mov_b32 {vr(sa)}, 19"); A.e(f"v_mov_b32 {vr(sb)}, 19")
    A.e(f"v_mov_b32 {vr(vT[4])}, 18")
    A.e(f"v_cmp_eq_u32 vcc, 1, {vr(q)}"); A.e("s_nop 1"); A.e(f"v_cndmask_b32 {vr(sa)}, {vr(sa)}, {vr(vT[4])}, vcc")
    A.e(f"v_cmp_eq_u32 vcc, 2, {vr(q)}"); A.e("s_nop 1"); A.e(f"v_cndmask_b32 {vr(sb)}, {vr(sb)}, {vr(vT[4])}, vcc")
    A.e(f"v_add_u32 {vr(vT[4])}, 16, {vr(gp)}")
    A.e(f"v_cmp_gt_u32 vcc, 5, {vr(vL15)}"); A.e(f"s_mov_b64 s[{sMk}:{sMk+1}], vcc")
    A.e(f"v_cmp_eq_u32 vcc, 0, {vr(q)}"); A.e(f"s_and_b64 s[{sMk}:{sMk+1}], s[{sMk}:{sMk+1}], vcc")
    A.e("s_nop 1"); A.e(f"v_cndmask_b32 {vr(sa)}, {vr(sa)}, {vr(vT[4])}, s[{sMk}:{sMk+1}]")
    A.e(f"v_add_u32 {vr(vT[4])}, 14, {vr(gp)}")
    A.e(f"v_cmp_lt_u32 s[{sMk}:{sMk+1}], 7, {vr(vL15)}"); A.e(f"s_and_b64 s[{sMk}:{sMk+1}], s[{sMk}:{sMk+1}], vcc")
    A.e("s_nop 1"); A.e(f"v_cndmask_b32 {vr(sb)}, {vr(sb)}, {vr(vT[4])}, s[{sMk}:{sMk+1}]")
    i40 = vT[5]; a40 = vT[6]; b40 = vT[7]
    A.e(f"v_mul_u32_u24 {vr(i40)}, 40, {vr(vL15)}"); A.e(f"v_add_u32 {vr(i40)}, s{sT0}, {vr(i40)}")
    A.e(f"v_mul_u32_u24 {vr(a40)}, 40, {vr(sa)}"); A.e(f"v_add_u32 {vr(a40)}, s{sT0}, {vr(a40)}")
    A.e(f"v_mul_u32_u24 {vr(b40)}, 40, {vr(sb)}"); A.e(f"v_add_u32 {vr(b40)}, s{sT0}, {vr(b40)}")
    A.e(f"v_lshl_add_u32 {vr(vM0)}, {vr(vG)}, 3, {vr(i40)}"); A.e(f"v_lshl_add_u32 {vr(vM1A)}, {vr(vG)}, 3, {vr(a40)}"); A.e(f"v_lshl_add_u32 {vr(vM1B)}, {vr(vG)}, 3, {vr(b40)}")
    A.e(f"s_add_u32 s{sT1}, s{sT0}, 760"); A.e(f"v_mov_b32 {vr(vT[0])}, s{sT1}")
    for gam in range(4):
        A.e(f"v_cmp_eq_u32 vcc, {gam}, {vr(vG)}"); A.e("s_nop 1")
        A.e(f"v_cndmask_b32 {vr(vC0+gam)}, {vr(vT[0])}, {vr(i40)}, vcc")
        A.e(f"v_cndmask_b32 {vr(vC1A+gam)}, {vr(vT[0])}, {vr(a40)}, vcc")
        A.e(f"v_cndmask_b32 {vr(vC1B+gam)}, {vr(vT[0])}, {vr(b40)}, vcc")
    A.e(f"v_cmp_gt_u32 s[{sG2}:{sG2+1}], 2, {vr(vG)}")
    A.e(f"v_mov_b32 {vr(vEpsC)}, 0"); A.e(f"v_mov_b32 {vr(vEpsC+1)}, {EPS:#x}"); A.e(f"v_mov_b32 {vr(vEpsC+2)}, {EPS:#x}"); A.e(f"v_mov_b32 {vr(vEpsC+3)}, 0")
    for i in range(48): A.e(f"v_accvgpr_write_b32 {ar(aAcc+i)}, 0")
    A.e(f"v_mul_u32_u24 {vr(vT[0])}, 13108, v0"); A.e(f"v_lshrrev_b32 {vr(vT[0])}, 16, {vr(vT[0])}")
    A.e(f"v_mul_u32_u24 {vr(vT[1])}, 5, {vr(vT[0])}"); A.e(f"v_sub_u32 {vr(vT[1])}, v0, {vr(vT[1])}")
    A.e(f"v_mul_u32_u24 {vr(vT[0])}, 800, {vr(vT[0])}"); A.e(f"v_lshl_add_u32 {vr(vT[0])}, {vr(vT[1])}, 3, {vr(vT[0])}")
    A.e(f"v_mov_b32 {vr(vT[2])}, 0"); A.e(f"v_mov_b32 {vr(vT[3])}, 0")
    assert vT[3] == vT[2] + 1 and vT[2] % 2 == 0
    A.e(f"v_cmp_gt_u32 vcc, 160, v0"); A.e(f"s_and_saveexec_b64 s[{sExec}:{sExec+1}], vcc")
    A.e(f"v_add_u32 {vr(vT[0])}, {KVI+760}, {vr(vT[0])}")
    A.e(f"ds_write_b64 {vr(vT[0])}, {vr(vT[2],2)}")
    A.e(f"s_mov_b64 exec, s[{sExec}:{sExec+1}]")
    A.e("s_waitcnt vmcnt(47)")
    for i in range(12):
        t0 = vT[4 + (i & 1)*2]; t1 = t0 + 1
        A.e(f"v_add_u32 {vr(t0)}, {256*i}, v0")
        A.e(f"v_mul_u32_u24 {vr(t1)}, 690, {vr(t0)}"); A.e(f"v_lshrrev_b32 {vr(t1)}, 16, {vr(t1)}"); A.e(f"v_mul_u32_u24 {vr(t1)}, 40, {vr(t1)}")
        A.e(f"v_lshl_add_u32 {vr(t0)}, {vr(t0)}, 3, {vr(t1)}")
        s = vO + 4*i
        A.e(f"v_cvt_pk_bf16_f32 {vr(s)}, {vr(s)}, {vr(s+1)}"); A.e(f"v_cvt_pk_bf16_f32 {vr(s+1)}, {vr(s+2)}, {vr(s+3)}")
        A.e(f"ds_write_b64 {vr(t0)}, {vr(s,2)} offset:{KVI}") if KVI < 65536 else (A.e(f"v_add_u32 {vr(t0)}, {KVI}, {vr(t0)}"), A.e(f"ds_write_b64 {vr(t0)}, {vr(s,2)}"))
    A.e("s_waitcnt vmcnt(0)")
    for sg in range(2):
        for p in range(8):
            src = vCb + (sg*2 + (p >> 2))*2
            A.e(f"v_pk_mov_b32 {vr(X(sg,p),2)}, {vr(src,2)}, {vr(src,2)} op_sel:[0,1]")
            A.e(f"v_pk_mov_b32 {vr(X(sg,p)+6,2)}, {vr(src,2)}, {vr(src,2)} op_sel:[0,1]")
    A.e("s_waitcnt lgkmcnt(0)")
    A.e("s_barrier")
    if stamps: A.e(f"s_memtime s[{sSt+4}:{sSt+5}]")

    def kv_reads(p):
        st = aKV + (p & 1)*16; gam = p & 3; hA = 2*p*800; hB = hA + 800
        return [
            f"ds_read_b64 {ar(st+0,2)}, {vr(vC0+gam)} offset:{hA+32}",
            f"ds_read_b64 {ar(st+2,2)}, {vr(vM0)} offset:{hA}",
            f"ds_read_b64 {ar(st+8,2)}, {vr(vC1A+gam)} offset:{hA+32}",
            f"ds_read_b64 {ar(st+10,2)}, {vr(vM1A)} offset:{hA}",
            f"ds_read_b64 {ar(st+4,2)}, {vr(vM0)} offset:{hB+8}",
            f"ds_read_b64 {ar(st+6,2)}, {vr(vC0+gam)} offset:{hB}",
            f"ds_read_b64 {ar(st+12,2)}, {vr(vM1B)} offset:{hB+8}",
            f"ds_read_b64 {ar(st+14,2)}, {vr(vC1B+gam)} offset:{hB}",
        ]
    def wo_reads(p):
        st = aWO + (p & 1)*24; l = []
        for tau in range(6):
            m, h = tau >> 1, tau & 1
            if p < 8:
                for sec in range(2):
                    kap = (p & 1) ^ sec
                    l.append(f"ds_read_b64_tr_b16 {ar(st+4*tau+2*sec,2)}, {vr(vB+(h^kap))} offset:{(36*p + 20*sec)*192 + 64*m}")
            else:
                for sec in range(2):
                    l.append(f"ds_read_b64_tr_b16 {ar(st+4*tau+2*sec,2)}, {vr(vE+h)} offset:{sec*144*192 + 64*m}")
        return l
    def O(sg, p): return vO + ((p & 1)*2 + sg)*12
    def o_mfmas(p):
        st = aKV + (p & 1)*16; l = []
        for sg in range(2):
            o = O(sg, p); x = X(sg, p)
            l.append(f"v_mfma_f32_16x16x32_bf16 {vr(o+8,4)}, {ar(st+8,4)}, {vr(x,4)}, {vr(vEpsC,4)}")
            l.append(f"v_mfma_f32_16x16x32_bf16 {vr(o,4)}, {ar(st,4)}, {vr(x,4)}, 0")
            l.append(f"v_mfma_f32_16x16x32_bf16 {vr(o+4,4)}, {ar(st+4,4)}, {vr(x+4,4)}, 0")
            l.append(f"v_mfma_f32_16x16x32_bf16 {vr(o+8,4)}, {ar(st+12,4)}, {vr(x+4,4)}, {vr(o+8,4)}")
        return l
    def valu(p):
        l = []
        for sg in range(2):
            o = O(sg, p); rA = vRc + sg*4; rB = rA + 2; rX = rA + 1; f = vOf + ((p & 1)*2 + sg)*4
            l += [f"v_rcp_f32 {vr(rA)}, {vr(o+9)}", f"v_rcp_f32 {vr(rB)}, {vr(o+10)}"]
            l += [f"s_nop 0"]
            l += [f"v_pk_mul_f32 {vr(o,2)}, {vr(o,2)}, {vr(rA,2)} op_sel_hi:[1,0]", f"v_pk_mul_f32 {vr(o+2,2)}, {vr(o+2,2)}, {vr(rA,2)} op_sel_hi:[1,0]"]
            l += [f"v_pk_mul_f32 {vr(o+4,2)}, {vr(o+4,2)}, {vr(rB,2)} op_sel_hi:[1,0]", f"v_pk_mul_f32 {vr(o+6,2)}, {vr(o+6,2)}, {vr(rB,2)} op_sel_hi:[1,0]"]
            l += [f"v_cndmask_b32 {vr(rX)}, {vr(rB)}, {vr(rA)}, s[{sG2}:{sG2+1}]"]
            l += [f"v_cvt_pk_bf16_f32 {vr(f)}, {vr(o)}, {vr(o+1)}", f"v_cvt_pk_bf16_f32 {vr(f+1)}, {vr(o+2)}, {vr(o+3)}",
                  f"v_cvt_pk_bf16_f32 {vr(f+2)}, {vr(o+4)}, {vr(o+5)}", f"v_cvt_pk_bf16_f32 {vr(f+3)}, {vr(o+6)}, {vr(o+7)}"]
            l += [f"v_mul_f32 {vr(vEx+sg*8+p)}, {vr(o+8)}, {vr(rX)}"]
        return l
    def main_mfmas(p):
        st = aWO + (p & 1)*24; l = []
        for tau in range(6):
            for sg in range(2):
                d = ar(aAcc + (sg*6 + tau)*4, 4); f = vOf + ((p & 1)*2 + sg)*4
                l.append(f"v_mfma_f32_16x16x32_bf16 {d}, {ar(st+4*tau,4)}, {vr(f,4)}, {d}")
        return l

    for i in kv_reads(0): A.e(i)
    for p in range(0, 10):
        if p < 8:
            A.e("s_waitcnt lgkmcnt(0)") if p == 0 else None
            om = o_mfmas(p)
        if p < 8:
            if p > 0: A.e("s_waitcnt lgkmcnt(12)")
            for i in om: A.e(i)
        if p < 7:
            for i in kv_reads(p+1): A.e(i)
        if p == 8:
            for sg in range(2):
                f = vOf + (0*2 + sg)*4
                pass
        if p >= 1:
            if p - 1 == 8:
                A.e("s_waitcnt lgkmcnt(0)")
            else:
                A.e(f"s_waitcnt lgkmcnt({8 if p < 7 else 0})")
            mm = main_mfmas(p-1)
        else: mm = []
        if p <= 8:
            wr = wo_reads(p)
        else: wr = []
        vl = valu(p) if p < 8 else []
        if p == 8:
            vl = []
            for sg in range(2):
                f = vOf + sg*4
                for h in range(4): vl.append(f"v_cvt_pk_bf16_f32 {vr(f+h)}, {vr(vEx+sg*8+2*h)}, {vr(vEx+sg*8+2*h+1)}")
        if mm:
            k = 0; fill = []
            fill = wr[:]
            vq = vl[:]
            for m, ins in enumerate(mm):
                A.e(ins)
                for _ in range(1):
                    if fill: A.e(fill.pop(0))
                if m >= 1:
                    for _ in range(3):
                        if vq: A.e(vq.pop(0))
            for i in fill: A.e(i)
            for i in vq: A.e(i)
        else:
            for i in wr: A.e(i)
            A.nop(8)
            for i in vl: A.e(i)
        A.nop(1)
    if stamps: A.e(f"s_memtime s[{sSt+6}:{sSt+7}]")
    A.nop(8)
    A.e(f"s_mul_i32 s{sT0}, s{sWave}, 6144"); A.e(f"s_add_u32 s{sT0}, s{sT0}, {XB}")
    A.e(f"v_lshlrev_b32 {vr(vT[0])}, 4, {vr(vLane)}"); A.e(f"v_add_u32 {vr(vT[1])}, s{sT0}, {vr(vT[0])}")
    A.e(f"s_xor_b32 s{sT1}, s{sWave}, 2"); A.e(f"s_mul_i32 s{sT1}, s{sT1}, 6144"); A.e(f"s_add_u32 s{sT1}, s{sT1}, {XB}")
    A.e(f"v_add_u32 {vr(vT[2])}, s{sT1}, {vr(vT[0])}")
    A.e(f"s_cmp_eq_u32 s{sKh}, 0"); A.e(f"s_cbranch_scc0 {name}_k1")
    for tau in range(6): A.e(f"ds_write_b128 {vr(vT[1])}, {ar(aAcc+(6+tau)*4,4)} offset:{tau*1024}")
    for i in range(24): A.e(f"v_accvgpr_read_b32 {vr(vX+i)}, {ar(aAcc+i)}")
    A.e(f"s_branch {name}_k2")
    A.label(f"{name}_k1")
    for tau in range(6): A.e(f"ds_write_b128 {vr(vT[1])}, {ar(aAcc+tau*4,4)} offset:{tau*1024}")
    for i in range(24): A.e(f"v_accvgpr_read_b32 {vr(vX+i)}, {ar(aAcc+24+i)}")
    A.label(f"{name}_k2")
    A.e("s_waitcnt lgkmcnt(0)"); A.e("s_barrier")
    for tau in range(6): A.e(f"ds_read_b128 {vr(vX+24+tau*4,4)}, {vr(vT[2])} offset:{tau*1024}")
    A.e(f"s_lshl_b32 s{sT0}, s{sMt}, 6"); A.e(f"s_lshl_b32 s{sT1}, s{sSp}, 5"); A.e(f"s_add_u32 s{sT0}, s{sT0}, s{sT1}"); A.e(f"s_lshl_b32 s{sT1}, s{sKh}, 4"); A.e(f"s_add_u32 s{sT0}, s{sT0}, s{sT1}")
    A.e(f"v_add_u32 {vr(vT[3])}, s{sT0}, {vr(vL15)}"); A.e(f"v_mul_u32_u24 {vr(vT[3])}, 1152, {vr(vT[3])}")
    A.e(f"s_mul_i32 s{sT0}, s{sNt}, 192"); A.e(f"v_lshl_add_u32 {vr(vT[3])}, {vr(vG)}, 3, {vr(vT[3])}"); A.e(f"v_add_u32 {vr(vT[3])}, s{sT0}, {vr(vT[3])}")
    A.e("s_waitcnt lgkmcnt(0)")
    for tau in range(6):
        for r in range(4): A.e(f"v_add_f32 {vr(vX+tau*4+r)}, {vr(vX+tau*4+r)}, {vr(vX+24+tau*4+r)}")
        A.e(f"v_cvt_pk_bf16_f32 {vr(vX+48+tau*2)}, {vr(vX+tau*4)}, {vr(vX+tau*4+1)}")
        A.e(f"v_cvt_pk_bf16_f32 {vr(vX+48+tau*2+1)}, {vr(vX+tau*4+2)}, {vr(vX+tau*4+3)}")
        A.e(f"buffer_store_dwordx2 {vr(vX+48+tau*2,2)}, {vr(vT[3])}, s[12:15], 0 offen offset:{tau*32}")
    if stamps:
        A.e("s_waitcnt vmcnt(0)")
        A.e(f"s_memtime s[{sSt+8}:{sSt+9}]")
        A.e("s_waitcnt lgkmcnt(0)")
        for i in (2, 4, 6, 8): A.e(f"s_sub_u32 s{sSt+i}, s{sSt+i}, s{sSt}")
        A.e(f"s_lshl_b32 s{sT0}, s2, 3"); A.e(f"s_add_u32 s{sT0}, s{sT0}, s{sWave}"); A.e(f"s_lshl_b32 s{sT0}, s{sT0}, 4"); A.e(f"s_add_u32 s{sT0}, s{sT0}, 0x500000")
        A.e(f"v_mov_b32 {vr(vX)}, s{sSt+2}"); A.e(f"v_mov_b32 {vr(vX+1)}, s{sSt+4}"); A.e(f"v_mov_b32 {vr(vX+2)}, s{sSt+6}"); A.e(f"v_mov_b32 {vr(vX+3)}, s{sSt+8}")
        A.e(f"v_mov_b32 {vr(vT[0])}, s{sT0}")
        A.e(f"v_cmp_eq_u32 vcc, 0, {vr(vLane)}"); A.e(f"s_and_saveexec_b64 s[{sExec}:{sExec+1}], vcc")
        A.e(f"global_store_dwordx4 {vr(vT[0])}, {vr(vX,4)}, s[18:19]")
    A.label(f"{name}_end")
    A.e("s_endpgm")
    return nv, na
```

```python
import sys, os
from asmlib import *
import k1, k2
opts = sys.argv[1:]
stamps = "stamps" in opts
A = Asm()
for l in open("standalone__linear_attn_block__prompt.s.ref").read().split("\n"):
    if l.startswith(";") and "@launch" not in l and "Override launch" not in l and "grid=ceil" not in l: A.L.append(l)
    elif not l.startswith(";"): break
A.L.append(f"; @launch kernel=la_k1_kernel grid=(200,1,1) block=(512,1,1) lds={k1.NST*k1.STAGE}")
A.L.append(f"; @launch kernel=la_k2_kernel grid=(192,1,1) block=(256,1,1) lds={k2.K2_LDS}")
A.L.append('.amdgcn_target "amdgcn-amd-amdhsa--gfx950"')
A.L.append(".text")
k1.kernel_header(A, "la_k1_kernel")
nv1 = k1.gen_k1(A, "la_k1_kernel", rot=("norot" not in opts), stamps=stamps, opts=opts)
k1.kernel_header(A, "la_k2_kernel")
nv2, na2 = k2.gen_k2(A, "la_k2_kernel", stamps=stamps, opts=opts)
A.L.append('.section .rodata,"a"'); A.L.append(".p2align 6")
k1.kernel_desc(A, "la_k1_kernel", nv1, 80)
A.L.append(".p2align 6")
k1.kernel_desc(A, "la_k2_kernel", nv2, 80, nagpr=na2)
print(A.text())
```

```python
from asmlib import *

PQ_STILE = 18432
KVS_OFF = 2359296
WS_BYTES = KVS_OFF + 32*1520
STAGE = 40960
import os
NST = int(os.environ.get('NST', '3'))
NPRE = int(os.environ.get('NPRE', '2'))
LOG2E = 0x3fb8aa3b
EPS = 0x358637bd

def gen_k1(a: Asm, name, rot=True, stamps=False, opts=()):
    A = a
    sWave = 24; sXcd = 25; sJ = 26; sMt = 27; sG = 28; sT0 = 29; sT1 = 30; sT2 = 31
    sC0 = 32
    sStageLd = 33
    sStageRd = 34
    sIt = 35
    sMX = 36; sMW = 37; sSo = 38; sXo = 39; sWo = 40
    sBaseW = 41; sD = 42; sDelta = 43; sHalf = 44; sRb = 45
    sU = 46
    sLog2e = 50; sEps = 51; sX = 52
    sExec = 54
    sM0 = 56
    sM1 = 58
    sSt = 60
    V = VAlloc(1, 256)
    vLane = V.get("lane"); vT0 = V.get("t0"); vT1 = V.get("t1"); vT2 = V.get("t2"); vT3 = V.get("t3"); vT4 = V.get("t4"); vT5 = V.get("t5")
    vL15 = V.get("l15"); vG = V.get("g"); vR = V.get("r"); vC = V.get("c")
    vXA = V.get("xa"); vW = V.get("w", 3)
    vRXb = V.get("rxb", 2); vRWb = V.get("rwb", 5)
    vRX = V.get("rx", 2); vRW = V.get("rw", 5)
    vFlag = V.get("flag"); vFlagA = V.get("flaga")
    F = []
    for f in range(2):
        fx = V.get(f"fx{f}", 8, 4); fw = V.get(f"fw{f}", 20, 4)
        F.append((fx, fw))
    vAcc = V.get("acc", 40, 4)
    vP = V.get("p", 24, 4)
    vOnes = V.get("ones", 4, 4)
    nv = V.n

    A.label(name)
    A.e("s_cmp_ge_u32 s2, 200"); A.e(f"s_cbranch_scc1 {name}_end")
    if stamps: A.e(f"s_memtime s[{sSt}:{sSt+1}]"); A.e(f"s_memrealtime s[{sSt+10}:{sSt+11}]")
    A.e("s_load_dwordx4 s[4:7], s[0:1], 0")
    A.e("s_load_dwordx4 s[16:19], s[0:1], 32")
    A.e(f"v_lshrrev_b32 {vr(vT0)}, 6, v0")
    A.e(f"v_and_b32 {vr(vLane)}, 63, v0")
    A.e(f"s_and_b32 s{sXcd}, s2, 7")
    A.e(f"v_readfirstlane_b32 s{sWave}, {vr(vT0)}")
    A.e(f"s_lshr_b32 s{sJ}, s2, 3")
    A.e(f"s_cmp_eq_u32 s{sJ}, 0"); A.e(f"s_cbranch_scc1 {name}_zero")
    A.e(f"s_sub_u32 s{sJ}, s{sJ}, 1")
    A.e(f"v_and_b32 {vr(vL15)}, 15, {vr(vLane)}")
    A.e(f"v_lshrrev_b32 {vr(vG)}, 4, {vr(vLane)}")
    A.e(f"v_bfe_u32 {vr(vR)}, {vr(vLane)}, 2, 2")
    A.e(f"v_and_b32 {vr(vC)}, 3, {vr(vLane)}")
    A.e(f"s_lshr_b32 s{sHalf}, s{sWave}, 2")
    A.e(f"s_and_b32 s{sRb}, s{sWave}, 3")
    A.e(f"s_and_b32 s{sT0}, s{sXcd}, 3"); A.e(f"s_lshl_b32 s{sT0}, s{sT0}, 2"); A.e(f"s_and_b32 s{sT1}, s{sJ}, 3"); A.e(f"s_add_u32 s{sMt}, s{sT0}, s{sT1}")
    if rot:
        A.e(f"s_lshr_b32 s{sT0}, s{sJ}, 2"); A.e(f"s_lshl_b32 s{sT1}, s{sT1}, 1"); A.e(f"s_add_u32 s{sC0}, s{sT0}, s{sT1}")
        A.e(f"s_cmp_ge_u32 s{sC0}, 9"); A.e(f"s_cselect_b32 s{sT0}, 9, 0"); A.e(f"s_sub_u32 s{sC0}, s{sC0}, s{sT0}")
    else:
        A.e(f"s_mov_b32 s{sC0}, 0")
    A.e(f"s_lshr_b32 s{sT2}, s{sXcd}, 2")
    A.e(f"s_cmp_ge_u32 s{sJ}, 16"); A.e(f"s_cbranch_scc1 {name}_setq")
    A.e(f"s_lshl_b32 s{sT2}, s{sT2}, 2"); A.e(f"s_lshr_b32 s{sT0}, s{sJ}, 2"); A.e(f"s_add_u32 s{sG}, s{sT2}, s{sT0}")
    A.e(f"s_mul_i32 s{sT0}, s{sG}, 144"); A.e(f"s_and_b32 s{sT0}, s{sT0}, 0xffffffc0"); A.e(f"s_add_u32 s{sBaseW}, s{sT0}, 1152")
    A.e(f"s_movk_i32 s{sD}, 960")
    A.e(f"s_and_b32 s{sDelta}, s{sG}, 3"); A.e(f"s_lshl_b32 s{sDelta}, s{sDelta}, 1")
    A.e(f"s_mul_i32 s{sT0}, s{sHalf}, 9"); A.e(f"s_add_u32 s{sT0}, s{sT0}, s{sDelta}")
    for t, u in enumerate([0, 5, 24, 29]): A.e(f"s_add_u32 s{sU+t}, s{sT0}, {u}")
    A.e(f"v_and_b32 {vr(vT0)}, 1, {vr(vC)}"); A.e(f"v_mul_u32_u24 {vr(vT0)}, 9, {vr(vT0)}")
    A.e(f"v_lshrrev_b32 {vr(vT1)}, 1, {vr(vC)}"); A.e(f"v_mul_u32_u24 {vr(vT1)}, 24, {vr(vT1)}")
    A.e(f"v_add3_u32 {vr(vT5)}, {vr(vT0)}, {vr(vT1)}, 4")
    A.e(f"s_branch {name}_setc")
    A.label(f"{name}_setq")
    A.e(f"s_lshl_b32 s{sT2}, s{sT2}, 1"); A.e(f"s_sub_u32 s{sT0}, s{sJ}, 16"); A.e(f"s_lshr_b32 s{sT0}, s{sT0}, 2"); A.e(f"s_add_u32 s{sG}, s{sT2}, s{sT0}")
    A.e(f"s_mul_i32 s{sT0}, s{sG}, 288"); A.e(f"s_and_b32 s{sBaseW}, s{sT0}, 0xffffffc0")
    A.e(f"s_sub_u32 s{sDelta}, s{sT0}, s{sBaseW}"); A.e(f"s_lshr_b32 s{sDelta}, s{sDelta}, 3")
    A.e(f"s_mov_b32 s{sD}, 0")
    A.e(f"s_mul_i32 s{sT0}, s{sHalf}, 18"); A.e(f"s_add_u32 s{sT0}, s{sT0}, s{sDelta}")
    for t, u in enumerate([0, 5, 9, 14]): A.e(f"s_add_u32 s{sU+t}, s{sT0}, {u}")
    A.e(f"v_mul_u32_u24 {vr(vT5)}, 9, {vr(vC)}"); A.e(f"v_add_u32 {vr(vT5)}, 4, {vr(vT5)}")
    A.label(f"{name}_setc")
    A.e(f"v_add_u32 {vr(vT5)}, s{sDelta}, {vr(vT5)}")
    A.e(f"s_lshl_b32 s{sT0}, s{sMt}, 7"); A.e(f"s_lshl_b32 s{sT1}, s{sWave}, 4"); A.e(f"s_add_u32 s{sT0}, s{sT0}, s{sT1}")
    A.e(f"v_lshrrev_b32 {vr(vT0)}, 3, {vr(vLane)}"); A.e(f"v_and_b32 {vr(vT1)}, 7, {vr(vLane)}"); A.e(f"v_xor_b32 {vr(vT1)}, {vr(vT1)}, {vr(vT0)}")
    A.e(f"v_add_u32 {vr(vT0)}, s{sT0}, {vr(vT0)}"); A.e(f"v_mul_u32_u24 {vr(vT0)}, 1152, {vr(vT0)}")
    A.e(f"v_lshl_add_u32 {vr(vXA)}, {vr(vT1)}, 4, {vr(vT0)}")
    A.e(f"s_and_b32 s{sT2}, s{sWave}, 1"); A.e(f"s_lshl_b32 s{sT2}, s{sT2}, 2")
    A.e(f"s_lshl_b32 s{sT1}, s{sWave}, 3")
    for i in range(3):
        A.e(f"v_add_u32 {vr(vT0)}, {64*i}, {vr(vLane)}")
        A.e(f"v_mul_u32_u24 {vr(vT1)}, 2731, {vr(vT0)}"); A.e(f"v_lshrrev_b32 {vr(vT1)}, 16, {vr(vT1)}")
        A.e(f"v_mul_u32_u24 {vr(vT2)}, 24, {vr(vT1)}"); A.e(f"v_sub_u32 {vr(vT2)}, {vr(vT0)}, {vr(vT2)}")
        A.e(f"v_and_b32 {vr(vT3)}, 2, {vr(vT1)}"); A.e(f"v_xor_b32 {vr(vT2)}, {vr(vT2)}, {vr(vT3)}")
        A.e(f"v_xor_b32 {vr(vT2)}, s{sT2}, {vr(vT2)}")
        A.e(f"v_add_u32 {vr(vT1)}, s{sT1}, {vr(vT1)}"); A.e(f"v_mul_u32_u24 {vr(vT1)}, 3456, {vr(vT1)}")
        A.e(f"v_lshl_add_u32 {vr(vT1)}, {vr(vT2)}, 4, {vr(vT1)}")
        A.e(f"v_mov_b32 {vr(vT3)}, s{sD}")
        A.e(f"v_cmp_le_u32 vcc, 12, {vr(vT2)}")
        A.e(f"v_add_u32 {vr(vT1)}, s{sBaseW}, {vr(vT1)}")
        A.e(f"s_nop 0")
        A.e(f"v_cndmask_b32 {vr(vT3)}, 0, {vr(vT3)}, vcc")
        A.e(f"v_add_u32 {vr(vW+i)}, {vr(vT1)}, {vr(vT3)}")
        if i: A.e(f"v_subrev_u32 {vr(vW+i)}, {1024*i}, {vr(vW+i)}")
    A.e(f"s_lshl_b32 s{sMX}, s{sWave}, 11")
    A.e(f"s_mul_i32 s{sMW}, s{sWave}, 3072"); A.e(f"s_add_u32 s{sMW}, s{sMW}, 16384")
    A.e(f"s_mov_b32 s{sStageLd}, 0")
    A.e(f"s_lshl_b32 s{sXo}, s{sC0}, 7")
    A.e("s_mov_b32 s10, 2359296"); A.e("s_mov_b32 s11, 0x20000")
    A.e("s_mov_b32 s14, 1990656"); A.e("s_mov_b32 s15, 0x20000")
    A.e("s_waitcnt lgkmcnt(0)")
    A.e("s_mov_b32 s8, s4"); A.e("s_mov_b32 s9, s5")
    A.e("s_mov_b32 s12, s6"); A.e("s_mov_b32 s13, s7")
    def post_setup():
        A.e(f"v_lshl_add_u32 {vr(vT0)}, {vr(vG)}, 3, {vr(vR)}")
        A.e(f"v_mul_u32_u24 {vr(vT0)}, 384, {vr(vT0)}"); A.e(f"v_add_u32 {vr(vT0)}, 16384, {vr(vT0)}")
        A.e(f"v_lshrrev_b32 {vr(vT1)}, 1, {vr(vR)}"); A.e(f"v_lshlrev_b32 {vr(vT1)}, 2, {vr(vT1)}")
        A.e(f"v_and_b32 {vr(vT2)}, 1, {vr(vG)}"); A.e(f"v_lshl_or_b32 {vr(vT1)}, {vr(vT2)}, 3, {vr(vT1)}")
        for t in range(4):
            A.e(f"v_add_u32 {vr(vT2)}, s{sU+t}, {vr(vC)}")
            A.e(f"v_xor_b32 {vr(vT2)}, {vr(vT2)}, {vr(vT1)}")
            A.e(f"v_lshl_add_u32 {vr(vRWb+t)}, {vr(vT2)}, 3, {vr(vT0)}")
        A.e(f"v_xor_b32 {vr(vT2)}, {vr(vT5)}, {vr(vT1)}")
        A.e(f"v_lshl_add_u32 {vr(vRWb+4)}, {vr(vT2)}, 3, {vr(vT0)}")
        A.e(f"s_lshl_b32 s{sT0}, s{sRb}, 5")
        A.e(f"v_add_u32 {vr(vT0)}, s{sT0}, {vr(vL15)}"); A.e(f"v_lshlrev_b32 {vr(vT0)}, 7, {vr(vT0)}")
        A.e(f"v_and_b32 {vr(vT1)}, 7, {vr(vLane)}"); A.e(f"v_xor_b32 {vr(vT1)}, {vr(vT1)}, {vr(vG)}")
        A.e(f"v_lshl_add_u32 {vr(vRXb)}, {vr(vT1)}, 4, {vr(vT0)}")
        A.e(f"v_xor_b32 {vr(vRXb+1)}, 64, {vr(vRXb)}")
    def post_setup2():
        A.e(f"s_mov_b32 s{sLog2e}, {LOG2E:#x}"); A.e(f"s_mov_b32 s{sEps}, {EPS:#x}")
        for i in range(40): A.e(f"v_mov_b32 {vr(vAcc+i)}, 0")
        A.e("s_mov_b32 s20, s18"); A.e("s_mov_b32 s21, s19"); A.e(f"s_mov_b32 s22, {WS_BYTES}"); A.e("s_mov_b32 s23, 0x20000")

    def dma_list():
        g = []
        g.append([f"s_add_u32 m0, s{sStageLd}, s{sMX}", f"s_add_u32 s{sSo}, s{sXo}, 8192"])
        g.append([f"buffer_load_dwordx4 {vr(vXA)}, s[8:11], s{sXo} offen lds"])
        g.append([f"s_mul_i32 s{sWo}, s{sXo}, 1728"])
        g.append([f"buffer_load_dwordx4 {vr(vXA)}, s[8:11], s{sSo} offen offset:1024 lds"])
        g.append([f"s_add_u32 m0, s{sStageLd}, s{sMW}", f"s_add_u32 s{sXo}, s{sXo}, 128"])
        g.append([f"buffer_load_dwordx4 {vr(vW)}, s[12:15], s{sWo} offen lds"])
        g.append([f"s_cmp_eq_u32 s{sXo}, 1152", f"s_cselect_b32 s{sXo}, 0, s{sXo}"])
        g.append([f"buffer_load_dwordx4 {vr(vW+1)}, s[12:15], s{sWo} offen offset:1024 lds"])
        g.append([f"s_add_u32 s{sStageLd}, s{sStageLd}, {STAGE}", f"s_cmp_eq_u32 s{sStageLd}, {NST*STAGE}", f"s_cselect_b32 s{sStageLd}, 0, s{sStageLd}"])
        g.append([f"buffer_load_dwordx4 {vr(vW+2)}, s[12:15], s{sWo} offen offset:2048 lds"])
        return g
    def dma_chunk():
        for grp in dma_list():
            for i in grp: A.e(i)

    def addr_list(nt):
        return [f"v_add_u32 {vr(vRX+i)}, s{sStageRd}, {vr(vRXb+i)}" for i in range(2)] + [f"v_add_u32 {vr(vRW+t)}, s{sStageRd}, {vr(vRWb+t)}" for t in range(nt)]
    def set_read_addrs(nt):
        for i in addr_list(nt): A.e(i)

    def read_list(f, kk, nt):
        fx, fw = F[f]
        if "noread" in opts: return []
        l = []
        l.append(f"ds_read_b128 {vr(fx,4)}, {vr(vRX+kk)}")
        l.append(f"ds_read_b64_tr_b16 {vr(fw,2)}, {vr(vRW)} offset:{kk*12288}")
        l.append(f"ds_read_b64_tr_b16 {vr(fw+2,2)}, {vr(vRW)} offset:{kk*12288+1536}")
        l.append(f"ds_read_b128 {vr(fx+4,4)}, {vr(vRX+kk)} offset:2048")
        for t in range(1, nt):
            l.append(f"ds_read_b64_tr_b16 {vr(fw+4*t,2)}, {vr(vRW+t)} offset:{kk*12288}")
            l.append(f"ds_read_b64_tr_b16 {vr(fw+4*t+2,2)}, {vr(vRW+t)} offset:{kk*12288+1536}")
        return l
    def reads(f, kk, nt):
        for i in read_list(f, kk, nt): A.e(i)

    def mfma_list(f, nt, isq):
        fx, fw = F[f]
        l = []
        for t in range(nt):
            for sg in range(2):
                d = vr(vAcc + (t*2+sg)*4, 4)
                x = vr(fx+4*sg, 4); w = vr(fw+4*t, 4)
                if isq: l.append(f"v_mfma_f32_16x16x32_bf16 {d}, {w}, {x}, {d}")
                else:   l.append(f"v_mfma_f32_16x16x32_bf16 {d}, {x}, {w}, {d}")
        return l

    def step(nt, isq, f, slots):
        ms = mfma_list(f, nt, isq)
        if "nomfma" in opts: ms = [None]*len(ms)
        nread = 2 + 2*nt
        issued = 0
        lastw = None
        for m in range(len(ms)):
            t = m // 2; sg = m % 2
            need = 3 if (t == 0 and sg == 0) else (4 if t == 0 else 4 + 2*t)
            if "noread" not in opts and (lastw is None or need > lastw):
                allowed = min(15, (nread - need) + issued)
                A.e(f"s_waitcnt lgkmcnt({allowed})"); lastw = need
            if ms[m]: A.e(ms[m])
            for kind, ins in slots[m]:
                for i in ins: A.e(i)
                if kind == 'r': issued += 1

    def mainloop(tag, nt, isq):
        nr = 2 + 2*nt
        A.e(f"s_mov_b32 s{sStageRd}, 0")
        set_read_addrs(nt)
        A.e(f"s_waitcnt vmcnt({5*(NST-1)})")
        A.e("s_barrier")
        reads(0, 0, nt)
        A.e(f"s_mov_b32 s{sIt}, 0")
        dl = dma_list() if "nodma" not in opts else []
        nB = 4; dB = dl[:nB]; dA = dl[nB:]
        def stepA(with_dma, adv=True):
            n = 2*nt
            slots = [[] for _ in range(n)]
            rl = read_list(1, 1, nt)
            for k, i in enumerate(rl): slots[k // 2].append(('r', [i]))
            if with_dma:
                pos = [0, 1, 2, 3, 4, 5]
                for k, g in enumerate(dA): slots[pos[k]].append(('x', g))
            if adv:
                last_r = (len(rl) - 1) // 2 if rl else 0
                slots[last_r].append(('x', [f"s_add_u32 s{sStageRd}, s{sStageRd}, {STAGE}", f"s_cmp_eq_u32 s{sStageRd}, {NST*STAGE}", f"s_cselect_b32 s{sStageRd}, 0, s{sStageRd}"]))
                al = addr_list(nt)
                rem = list(range(last_r + 1, n))
                for k, i in enumerate(al): slots[rem[min(k * len(rem) // len(al), len(rem) - 1)]].append(('x', [i]))
            step(nt, isq, 0, slots)
        def stepB(wait, with_dma, last):
            ms = mfma_list(1, nt, isq)
            if "nomfma" in opts: ms = [None]*len(ms)
            if "noread" not in opts: A.e("s_waitcnt lgkmcnt(0)")
            npre = NPRE
            for m in range(npre):
                if ms[m]: A.e(ms[m])
            if last:
                for m in range(npre, len(ms)):
                    if ms[m]: A.e(ms[m])
                return
            A.e(wait); A.e("s_barrier")
            n = len(ms) - npre
            slots = [[] for _ in range(n)]
            rl = read_list(0, 0, nt)
            per = -(-len(rl) // n) if rl else 0
            for k, i in enumerate(rl): slots[min(k // max(per, 2), n - 1)].append(i)
            if with_dma:
                pos = [0, 1, 2, min(3, n-1)]
                for k, g in enumerate(dB): slots[pos[k]] += g
            for m in range(n):
                if ms[npre+m]: A.e(ms[npre+m])
                for i in slots[m]: A.e(i)
        D = NST
        nd = 9 - D
        stepA(False)
        A.label(f"{tag}_loop")
        stepB(f"s_waitcnt vmcnt({5*(D-2)})", True, False)
        stepA(True)
        A.e(f"s_add_u32 s{sIt}, s{sIt}, 1"); A.e(f"s_cmp_lt_u32 s{sIt}, {nd}"); A.e(f"s_cbranch_scc1 {tag}_loop")
        for c in range(nd, 8):
            left = 8 - (c + 1)
            stepB(f"s_waitcnt vmcnt({5*left})", False, False)
            stepA(False, adv=(c < 7))
        stepB(None, False, True)

    def phi(r, tmp):
        A.e(f"v_mul_f32 {vr(tmp)}, s{sLog2e}, {vr(r)}")
        A.e(f"v_exp_f32_e64 {vr(tmp)}, {vr(tmp)} clamp")
        A.e(f"v_max_f32 {vr(r)}, 0, {vr(r)}")
        A.e(f"v_add_f32 {vr(r)}, s{sEps}, {vr(r)}")
        A.e(f"v_add_f32 {vr(r)}, {vr(r)}, {vr(tmp)}")

    dma_chunk()
    if stamps: A.e(f"s_memtime s[{sSt+2}:{sSt+3}]")
    post_setup()
    dma_chunk()
    post_setup2()
    for _ in range(NST-2): dma_chunk()
    A.e(f"s_cmp_ge_u32 s{sJ}, 16"); A.e(f"s_cbranch_scc1 {name}_q")
    A.e(f"s_cmp_eq_u32 s{sHalf}, 0"); A.e(f"s_cbranch_scc0 {name}_kv1")
    def ml(tag, nt, isq):
        mainloop(tag, nt, isq)
        if "twice" in opts:
            A.e("s_barrier")
            A.e(f"s_memtime s[{sSt+2}:{sSt+3}]")
            A.e(f"s_mov_b32 s{sStageLd}, 0")
            for _ in range(NST): dma_chunk()
            mainloop(tag + "b", nt, isq)
    ml(f"{name}_kv0", 5, False)
    A.e(f"s_branch {name}_kvepi")
    A.label(f"{name}_kv1")
    ml(f"{name}_kv1l", 4, False)
    A.label(f"{name}_kvepi")
    if stamps: A.e(f"s_memtime s[{sSt+4}:{sSt+5}]")
    A.e(f"s_lshl_b32 s{sT0}, s{sG}, 2"); A.e(f"v_mov_b32 {vr(vFlagA)}, s{sT0}")
    A.e(f"global_load_dword {vr(vFlag)}, {vr(vFlagA)}, s[16:17] sc1")
    STG = 40960
    A.e(f"v_mov_b32 {vr(vP+0)}, 0"); A.e(f"v_mov_b32 {vr(vP+1)}, 0"); A.e(f"v_mov_b32 {vr(vP+2)}, 0"); A.e(f"v_mov_b32 {vr(vP+3)}, 0")
    A.e(f"v_lshlrev_b32 {vr(vT0)}, 4, v0")
    A.e(f"v_cmp_gt_u32 vcc, 380, v0")
    A.e(f"s_and_saveexec_b64 s[{sExec}:{sExec+1}], vcc")
    A.e(f"ds_write_b128 {vr(vT0)}, {vr(vP,4)} offset:{STG}")
    A.e(f"s_mov_b64 exec, s[{sExec}:{sExec+1}]")
    A.nop(4)
    for t in range(2):
        for i in range(8):
            phi(vAcc + t*8 + i, vT0 + (i & 3))
    A.e(f"s_cmp_eq_u32 s{sHalf}, 0"); A.e(f"s_cbranch_scc0 {name}_not8")
    A.e(f"v_cmp_gt_u32 s[{sM0}:{sM0+1}], 8, {vr(vL15)}")
    for i in range(8):
        r = vAcc + 32 + i
        A.e(f"v_mov_b32 {vr(vT4)}, {vr(r)}")
        phi(r, vT0 + (i & 3))
        A.e(f"v_cndmask_b32 {vr(r)}, {vr(vT4)}, {vr(r)}, s[{sM0}:{sM0+1}]")
    A.label(f"{name}_not8")
    A.e(f"s_lshl_b32 s{sT0}, s{sHalf}, 1"); A.e(f"s_lshl_b32 s{sT0}, s{sT0}, 2"); A.e(f"s_add_u32 s{sT0}, s{sT0}, s{sRb}"); A.e(f"s_lshl_b32 s{sT0}, s{sT0}, 10")
    A.e(f"v_lshlrev_b32 {vr(vT0)}, 4, {vr(vLane)}"); A.e(f"v_add_u32 {vr(vT0)}, s{sT0}, {vr(vT0)}")
    exbase = [0, 1, 4, 5]
    for t in range(4):
        p = vP + 4*t
        for h in range(4):
            A.e(f"v_cvt_pk_bf16_f32 {vr(p+h)}, {vr(vAcc+t*8+2*h)}, {vr(vAcc+t*8+2*h+1)}")
        A.e(f"ds_write_b128 {vr(vT0)}, {vr(p,4)} offset:{exbase[t]*4096}")
    A.e(f"s_cmp_eq_u32 s{sHalf}, 0"); A.e(f"s_cbranch_scc0 {name}_not8b")
    p = vP + 16
    for h in range(4):
        A.e(f"v_cvt_pk_bf16_f32 {vr(p+h)}, {vr(vAcc+32+2*h)}, {vr(vAcc+32+2*h+1)}")
    A.e(f"ds_write_b128 {vr(vT0)}, {vr(p,4)} offset:{8*4096}")
    A.label(f"{name}_not8b")
    for i in range(4): A.e(f"v_mov_b32 {vr(vOnes+i)}, 0x3f803f80")
    A.e("s_waitcnt lgkmcnt(0)")
    A.e("s_barrier")
    fa = F[0][0]
    assert F[0][1] == fa + 8 and F[1][0] == fa + 28
    TA = fa; TB = fa + 16; T8 = fa + 32
    A.e(f"v_lshlrev_b32 {vr(vT0)}, 4, {vr(vLane)}")
    A.e(f"s_lshl_b32 s{sT0}, s{sRb}, 12")
    A.e(f"v_add_u32 {vr(vT1)}, s{sT0}, {vr(vT0)}")
    for rb in range(4): A.e(f"ds_read_b128 {vr(T8+4*rb,4)}, {vr(vT0)} offset:{8*4096+rb*1024}")
    for rb in range(4): A.e(f"ds_read_b128 {vr(TB+4*rb,4)}, {vr(vT1)} offset:{4*4096+rb*1024}")
    A.e(f"s_mul_i32 s{sT1}, s{sRb}, 1520"); A.e(f"s_add_u32 s{sT1}, s{sT1}, {STG}")
    A.e(f"s_and_b32 s{sX}, s{sRb}, 1")
    A.e(f"s_lshr_b32 s{sT2}, s{sRb}, 1"); A.e(f"s_lshl_b32 s{sT0}, s{sT2}, 2"); A.e(f"s_lshl_b32 s{sSo}, s{sX}, 1"); A.e(f"s_add_u32 s{sT0}, s{sT0}, s{sSo}"); A.e(f"s_add_u32 s{sT0}, s{sT0}, 8")
    A.e(f"v_subrev_u32 {vr(vT3)}, s{sT0}, {vr(vL15)}")
    A.e(f"v_cmp_gt_u32 s[{sM0}:{sM0+1}], 2, {vr(vT3)}")
    A.e(f"v_cmp_eq_u32 s[{sM1}:{sM1+1}], 0, {vr(vL15)}")
    acc0 = vAcc; acc1 = vAcc + 4; acc2 = vAcc + 8
    A.e(f"s_cmp_eq_u32 s{sHalf}, 0"); A.e(f"s_cbranch_scc0 {name}_part1")
    for rb in range(4): A.e(f"ds_read_b128 {vr(TA+4*rb,4)}, {vr(vT1)} offset:{rb*1024}")
    A.e("s_waitcnt lgkmcnt(0)")
    for rb in range(4):
        c = "0" if rb == 0 else None
        A.e(f"v_mfma_f32_16x16x32_bf16 {vr(acc0,4)}, {vr(TA+4*rb,4)}, {vr(TB+4*rb,4)}, {c or vr(acc0,4)}")
        A.e(f"v_mfma_f32_16x16x32_bf16 {vr(acc1,4)}, {vr(TA+4*rb,4)}, {vr(T8+4*rb,4)}, {c or vr(acc1,4)}")
        A.e(f"v_mfma_f32_16x16x32_bf16 {vr(acc2,4)}, {vr(TA+4*rb,4)}, {vr(vOnes,4)}, {c or vr(acc2,4)}")
    A.e(f"s_lshl_b32 s{sT2}, s{sX}, 4"); A.e(f"s_add_u32 s{sT2}, s{sT2}, s{sT1}")
    A.e(f"v_lshlrev_b32 {vr(vT4)}, 4, {vr(vG)}"); A.e(f"v_add_u32 {vr(vT4)}, s{sT2}, {vr(vT4)}")
    A.e(f"v_mul_u32_u24 {vr(vT0)}, 80, {vr(vL15)}"); A.e(f"v_add_u32 {vr(vT0)}, {vr(vT0)}, {vr(vT4)}")
    A.e(f"v_mul_u32_u24 {vr(vT1)}, 80, {vr(vT3)}"); A.e(f"v_add_u32 {vr(vT1)}, {vr(vT1)}, {vr(vT4)}")
    A.nop(8)
    A.e(f"ds_write_b128 {vr(vT0)}, {vr(acc0,4)}")
    A.e(f"s_mov_b64 s[{sExec}:{sExec+1}], exec")
    A.e(f"s_mov_b64 exec, s[{sM0}:{sM0+1}]")
    A.e(f"ds_write_b128 {vr(vT1)}, {vr(acc1,4)} offset:{16*80}")
    A.e(f"s_mov_b64 exec, s[{sM1}:{sM1+1}]")
    A.e(f"ds_write_b128 {vr(vT4)}, {vr(acc2,4)} offset:{18*80}")
    A.e(f"s_mov_b64 exec, s[{sExec}:{sExec+1}]")
    A.e(f"s_branch {name}_kvdone")
    A.label(f"{name}_part1")
    A.e("s_waitcnt lgkmcnt(0)")
    for rb in range(4):
        c = "0" if rb == 0 else None
        A.e(f"v_mfma_f32_16x16x32_bf16 {vr(acc0,4)}, {vr(T8+4*rb,4)}, {vr(TB+4*rb,4)}, {c or vr(acc0,4)}")
        A.e(f"v_mfma_f32_16x16x32_bf16 {vr(acc1,4)}, {vr(T8+4*rb,4)}, {vr(T8+4*rb,4)}, {c or vr(acc1,4)}")
        A.e(f"v_mfma_f32_16x16x32_bf16 {vr(acc2,4)}, {vr(T8+4*rb,4)}, {vr(vOnes,4)}, {c or vr(acc2,4)}")
    A.e(f"s_cmp_eq_u32 s{sX}, 0"); A.e(f"s_cselect_b32 s{sT2}, 64, 8"); A.e(f"s_add_u32 s{sT2}, s{sT2}, s{sT1}")
    A.e(f"v_mul_u32_u24 {vr(vT0)}, 80, {vr(vL15)}"); A.e(f"v_add_u32 {vr(vT0)}, s{sT2}, {vr(vT0)}")
    A.e(f"v_mul_u32_u24 {vr(vT1)}, 80, {vr(vT3)}"); A.e(f"v_add_u32 {vr(vT1)}, s{sT2}, {vr(vT1)}")
    A.e(f"v_mov_b32 {vr(vT4)}, s{sT2}")
    A.e(f"s_lshr_b32 s{sT0}, s{sRb}, 1")
    A.e(f"v_cmp_eq_u32 vcc, s{sT0}, {vr(vG)}")
    A.nop(6)
    A.e(f"s_cmp_eq_u32 s{sX}, 0"); A.e(f"s_cbranch_scc1 {name}_xe")
    for acc in (acc0, acc1, acc2):
        A.e(f"v_mov_b32 {vr(acc)}, {vr(acc+2)}"); A.e(f"v_mov_b32 {vr(acc+1)}, {vr(acc+3)}")
    A.label(f"{name}_xe")
    A.e(f"s_mov_b64 s[{sExec}:{sExec+1}], exec")
    A.e(f"s_and_b64 s[{sM0}:{sM0+1}], s[{sM0}:{sM0+1}], vcc")
    A.e(f"s_and_b64 s[{sM1}:{sM1+1}], s[{sM1}:{sM1+1}], vcc")
    A.e(f"s_mov_b64 exec, vcc")
    A.e(f"ds_write_b64 {vr(vT0)}, {vr(acc0,2)}")
    A.e(f"s_mov_b64 exec, s[{sM0}:{sM0+1}]")
    A.e(f"ds_write_b64 {vr(vT1)}, {vr(acc1,2)} offset:{16*80}")
    A.e(f"s_mov_b64 exec, s[{sM1}:{sM1+1}]")
    A.e(f"ds_write_b64 {vr(vT4)}, {vr(acc2,2)} offset:{18*80}")
    A.e(f"s_mov_b64 exec, s[{sExec}:{sExec+1}]")
    A.label(f"{name}_kvdone")
    A.e("s_waitcnt lgkmcnt(0)")
    A.e("s_barrier")
    A.e(f"v_lshlrev_b32 {vr(vT0)}, 2, v0")
    for i in range(3): A.e(f"ds_read_b32 {vr(vP+i)}, {vr(vT0)} offset:{STG + 2048*i}")
    A.e(f"s_mul_i32 s{sT0}, s{sG}, 6080"); A.e(f"s_add_u32 s{sT0}, s{sT0}, {KVS_OFF}")
    A.e(f"v_add_u32 {vr(vT1)}, s{sT0}, {vr(vT0)}")
    A.e(f"v_add_u32 {vr(vT2)}, 2048, {vr(vT1)}"); A.e(f"v_add_u32 {vr(vT3)}, 4096, {vr(vT1)}")
    A.e(f"v_mov_b32 {vr(vT4)}, {1520-1024}")
    A.e(f"v_cmp_lt_u32 s[{sM0}:{sM0+1}], v0, {vr(vT4)}")
    A.label(f"{name}_poll")
    A.e("s_waitcnt vmcnt(0)")
    A.e(f"v_readfirstlane_b32 s{sT0}, {vr(vFlag)}")
    A.e("s_nop 3")
    A.e(f"s_cmp_lg_u32 s{sT0}, 0"); A.e(f"s_cbranch_scc1 {name}_go")
    A.e(f"global_load_dword {vr(vFlag)}, {vr(vFlagA)}, s[16:17] sc1")
    A.e(f"s_branch {name}_poll")
    A.label(f"{name}_go")
    A.e("s_waitcnt lgkmcnt(0)")
    A.e(f"global_atomic_add_f32 {vr(vT1)}, {vr(vP)}, s[18:19]")
    A.e(f"global_atomic_add_f32 {vr(vT2)}, {vr(vP+1)}, s[18:19]")
    A.e(f"s_mov_b64 exec, s[{sM0}:{sM0+1}]")
    A.e(f"s_cbranch_execz {name}_fin")
    A.e(f"global_atomic_add_f32 {vr(vT3)}, {vr(vP+2)}, s[18:19]")
    A.e(f"s_branch {name}_fin")
    A.label(f"{name}_q")
    A.e(f"s_cmp_eq_u32 s{sHalf}, 0"); A.e(f"s_cbranch_scc0 {name}_q1")
    ml(f"{name}_q0", 5, True)
    A.e(f"s_branch {name}_qepi")
    A.label(f"{name}_q1")
    ml(f"{name}_q1l", 4, True)
    A.label(f"{name}_qepi")
    if stamps: A.e(f"s_memtime s[{sSt+4}:{sSt+5}]")
    A.e(f"s_lshl_b32 s{sT0}, s{sMt}, 3"); A.e(f"s_lshl_b32 s{sT1}, s{sRb}, 1"); A.e(f"s_add_u32 s{sT0}, s{sT0}, s{sT1}"); A.e(f"s_mul_i32 s{sT0}, s{sT0}, {PQ_STILE}")
    A.e(f"s_lshl_b32 s{sT1}, s{sG}, 2"); A.e(f"s_lshl_b32 s{sT2}, s{sHalf}, 1"); A.e(f"s_add_u32 s{sT1}, s{sT1}, s{sT2}"); A.e(f"s_lshl_b32 s{sT1}, s{sT1}, 10")
    A.e(f"s_add_u32 s{sT1}, s{sT1}, s{sT0}")
    A.e(f"v_lshlrev_b32 {vr(vT4)}, 4, {vr(vLane)}"); A.e(f"v_add_u32 {vr(vT4)}, s{sT1}, {vr(vT4)}")
    A.e(f"s_lshl_b32 s{sT1}, s{sG}, 9"); A.e(f"s_add_u32 s{sT1}, s{sT1}, s{sT0}"); A.e(f"s_add_u32 s{sT1}, s{sT1}, 16384")
    A.e(f"v_lshlrev_b32 {vr(vT5)}, 3, {vr(vLane)}"); A.e(f"v_add_u32 {vr(vT5)}, s{sT1}, {vr(vT5)}")
    A.e(f"s_mov_b32 s{sSo}, {PQ_STILE}")
    A.nop(4)
    k = 0
    for i in range(2):
        for sg in range(2):
            p = vP + 4*(k % 4); k += 1
            for tt in range(2):
                t = 2*i + tt
                for r in range(4): phi(vAcc + (t*2+sg)*4 + r, vT0 + r)
                for h in range(2):
                    A.e(f"v_cvt_pk_bf16_f32 {vr(p+2*tt+h)}, {vr(vAcc+(t*2+sg)*4+2*h)}, {vr(vAcc+(t*2+sg)*4+2*h+1)}")
            so = "0" if sg == 0 else f"s{sSo}"
            A.e(f"buffer_store_dwordx4 {vr(p,4)}, {vr(vT4)}, s[20:23], {so} offen offset:{i*1024}")
    A.e(f"s_cmp_eq_u32 s{sHalf}, 0"); A.e(f"s_cbranch_scc0 {name}_fin")
    for sg in range(2):
        p = vP + 16 + 2*sg
        for r in range(4): phi(vAcc + (8+sg)*4 + r, vT0 + r)
        for h in range(2):
            A.e(f"v_cvt_pk_bf16_f32 {vr(p+h)}, {vr(vAcc+(8+sg)*4+2*h)}, {vr(vAcc+(8+sg)*4+2*h+1)}")
        so = "0" if sg == 0 else f"s{sSo}"
        A.e(f"buffer_store_dwordx2 {vr(p,2)}, {vr(vT5)}, s[20:23], {so} offen")
    A.e(f"s_branch {name}_fin")
    A.label(f"{name}_zero")
    A.e("s_waitcnt lgkmcnt(0)")
    A.e(f"s_mul_i32 s{sT0}, s2, 6080"); A.e(f"s_add_u32 s{sT0}, s{sT0}, {KVS_OFF}")
    A.e(f"v_lshlrev_b32 {vr(vT0)}, 4, v0"); A.e(f"v_add_u32 {vr(vT0)}, s{sT0}, {vr(vT0)}")
    for i in range(4): A.e(f"v_mov_b32 {vr(vP+i)}, 0")
    A.e(f"v_mov_b32 {vr(vT1)}, 380")
    A.e(f"v_cmp_lt_u32 vcc, v0, {vr(vT1)}")
    A.e(f"s_and_saveexec_b64 s[{sExec}:{sExec+1}], vcc")
    A.e(f"s_cbranch_execz {name}_zs")
    A.e(f"global_store_dwordx4 {vr(vT0)}, {vr(vP,4)}, s[18:19] sc1")
    A.label(f"{name}_zs")
    A.e(f"s_mov_b64 exec, s[{sExec}:{sExec+1}]")
    A.e("s_waitcnt vmcnt(0)")
    A.e("s_barrier")
    A.e(f"s_cmp_eq_u32 s{sWave}, 0"); A.e(f"s_cbranch_scc0 {name}_end")
    A.e(f"s_lshl_b32 s{sT0}, s2, 2"); A.e(f"v_mov_b32 {vr(vT0)}, s{sT0}"); A.e(f"v_mov_b32 {vr(vT1)}, 1")
    A.e(f"v_cmp_eq_u32 vcc, 0, {vr(vLane)}")
    A.e(f"s_and_saveexec_b64 s[{sExec}:{sExec+1}], vcc")
    A.e(f"global_store_dword {vr(vT0)}, {vr(vT1)}, s[16:17] sc1")
    A.e(f"s_branch {name}_end")
    A.label(f"{name}_fin")
    if stamps:
        A.e("s_mov_b64 exec, -1")
        A.e("s_waitcnt vmcnt(0)")
        A.e(f"s_memtime s[{sSt+6}:{sSt+7}]")
        A.e(f"s_memrealtime s[{sSt+8}:{sSt+9}]")
        A.e("s_waitcnt lgkmcnt(0)")
        for i in (2, 4, 6): A.e(f"s_sub_u32 s{sSt+i}, s{sSt+i}, s{sSt}")
        A.e(f"s_lshl_b32 s{sT0}, s2, 3"); A.e(f"s_add_u32 s{sT0}, s{sT0}, s{sWave}"); A.e(f"s_lshl_b32 s{sT0}, s{sT0}, 4"); A.e(f"s_add_u32 s{sT0}, s{sT0}, 0x400000")
        A.e(f"v_mov_b32 {vr(vP)}, s{sSt+2}"); A.e(f"v_mov_b32 {vr(vP+1)}, s{sSt+4}"); A.e(f"v_mov_b32 {vr(vP+2)}, s{sSt+6}"); A.e(f"v_mov_b32 {vr(vP+3)}, s{sSt+8}")
        A.e(f"v_mov_b32 {vr(vT0)}, s{sT0}")
        A.e(f"v_cmp_eq_u32 vcc, 0, {vr(vLane)}"); A.e(f"s_and_saveexec_b64 s[{sExec}:{sExec+1}], vcc")
        A.e(f"global_store_dwordx4 {vr(vT0)}, {vr(vP,4)}, s[18:19]")
        A.e(f"v_mov_b32 {vr(vP+4)}, s{sSt+10}"); A.e(f"v_mov_b32 {vr(vP+5)}, s{sSt+8}")
        A.e(f"v_add_u32 {vr(vT0)}, 0x40000, {vr(vT0)}")
        A.e(f"global_store_dwordx2 {vr(vT0)}, {vr(vP+4,2)}, s[18:19]")
    A.label(f"{name}_end")
    A.e("s_endpgm")
    return nv

def kernel_header(A, name):
    A.e(f".globl {name}"); A.L.append(".p2align 8"); A.L.append(f".type {name},@function")

def kernel_desc(A, name, nvgpr, nsgpr, accum=None, nagpr=0):
    acc = accum if accum else (nvgpr + 3)//4*4
    tot = acc + nagpr if nagpr else nvgpr
    A.L.append(f".amdhsa_kernel {name}")
    A.L.append(f"  .amdhsa_next_free_vgpr {tot}")
    A.L.append(f"  .amdhsa_next_free_sgpr {nsgpr}")
    A.L.append(f"  .amdhsa_accum_offset {acc}")
    A.L.append("  .amdhsa_group_segment_fixed_size 0")
    A.L.append("  .amdhsa_kernarg_size 48")
    A.L.append("  .amdhsa_user_sgpr_count 2")
    A.L.append("  .amdhsa_user_sgpr_kernarg_segment_ptr 1")
    A.L.append("  .amdhsa_system_sgpr_workgroup_id_x 1")
    A.L.append(".end_amdhsa_kernel")

if __name__ == "__main__":
    import sys
    rot = "norot" not in sys.argv
    A = Asm()
    A.L.append("; @launch kernel=k1_kernel grid=(200,1,1) block=(512,1,1) lds=%d" % (NST*STAGE))
    A.L.append('.amdgcn_target "amdgcn-amd-amdhsa--gfx950"')
    A.L.append(".text")
    kernel_header(A, "k1_kernel")
    nv = gen_k1(A, "k1_kernel", rot=rot, stamps=True, opts=sys.argv[1:])
    A.L.append('.section .rodata,"a"'); A.L.append(".p2align 6")
    kernel_desc(A, "k1_kernel", nv, 80)
    print(A.text())
```

```python
from asmlib import *
from k1 import PQ_STILE, KVS_OFF, WS_BYTES, EPS
import os

WO_LDS = 0
KVI = 110592
XB = KVI + 25600 + 512
K2_LDS = XB + 24*1024

def gen_k2(A: Asm, name, stamps=False, opts=()):
    sWave = 24; sXcd = 25; sJ = 26; sMt = 27; sNt = 28; sT0 = 29; sT1 = 30; sT2 = 31
    sSp = 32; sKh = 33; sSo = 34; sM0 = 35
    sExec = 40; sMk = 42
    sG2 = 44
    sSt = 60
    V = VAlloc(1, 256)
    vLane = V.get("lane"); vT = [V.get(f"t{i}") for i in range(8)]
    vL15 = V.get("l15"); vG = V.get("g"); vR = V.get("r"); vC = V.get("c")
    vWA = V.get("wa", 3)
    vB = V.get("B", 2); vE = V.get("E", 2)
    vM0 = V.get("M0"); vM1A = V.get("M1A"); vM1B = V.get("M1B")
    vC0 = V.get("C0", 4); vC1A = V.get("C1A", 4); vC1B = V.get("C1B", 4)
    vEpsC = V.get("epsc", 4, 4)
    vCb = V.get("cb", 8, 2)
    vX = V.get("X", 128, 4)
    vO = V.get("o", 48, 4)
    vEx = V.get("ex", 16, 2)
    vOf = V.get("of", 16, 4)
    vRc = vCb
    nv = V.n
    aAcc = 0
    aKV = 48
    aWO = 80
    na = 128
    def X(sg, p): return vX + (sg*8 + p)*8

    A.label(name)
    A.e("s_cmp_ge_u32 s2, 192"); A.e(f"s_cbranch_scc1 {name}_end")
    if stamps: A.e(f"s_memtime s[{sSt}:{sSt+1}]"); A.e(f"s_memrealtime s[{sSt+10}:{sSt+11}]")
    A.e("s_load_dwordx4 s[4:7], s[0:1], 16")
    A.e("s_load_dwordx2 s[18:19], s[0:1], 40")
    A.e(f"v_lshrrev_b32 {vr(vT[0])}, 6, v0"); A.e(f"v_and_b32 {vr(vLane)}, 63, v0")
    A.e(f"s_and_b32 s{sXcd}, s2, 7")
    A.e(f"v_readfirstlane_b32 s{sWave}, {vr(vT[0])}")
    A.e(f"s_lshr_b32 s{sJ}, s2, 3")
    A.e(f"s_and_b32 s{sT0}, s{sJ}, 3"); A.e(f"s_lshl_b32 s{sMt}, s{sXcd}, 2"); A.e(f"s_add_u32 s{sMt}, s{sMt}, s{sT0}")
    A.e(f"s_lshr_b32 s{sNt}, s{sJ}, 2")
    A.e(f"s_and_b32 s{sSp}, s{sWave}, 1"); A.e(f"s_lshr_b32 s{sKh}, s{sWave}, 1")
    A.e(f"v_lshlrev_b32 {vr(vT[1])}, 4, v0"); A.e(f"v_add_u32 {vr(vT[1])}, {KVS_OFF}, {vr(vT[1])}")
    A.e(f"s_lshl_b32 s{sT0}, s{sMt}, 2"); A.e(f"s_lshl_b32 s{sT1}, s{sSp}, 1"); A.e(f"s_add_u32 s{sT0}, s{sT0}, s{sT1}"); A.e(f"s_mul_i32 s{sT0}, s{sT0}, {PQ_STILE}")
    A.e(f"s_lshl_b32 s{sT1}, s{sKh}, 13"); A.e(f"s_add_u32 s{sT1}, s{sT1}, s{sT0}")
    A.e(f"v_lshlrev_b32 {vr(vT[2])}, 4, {vr(vLane)}"); A.e(f"v_add_u32 {vr(vT[2])}, s{sT1}, {vr(vT[2])}")
    A.e(f"s_lshl_b32 s{sT1}, s{sKh}, 10"); A.e(f"s_add_u32 s{sT1}, s{sT1}, s{sT0}"); A.e(f"s_add_u32 s{sT1}, s{sT1}, 16384")
    A.e(f"v_lshlrev_b32 {vr(vT[3])}, 3, {vr(vLane)}"); A.e(f"v_add_u32 {vr(vT[3])}, s{sT1}, {vr(vT[3])}")
    A.e(f"s_mul_i32 s{sT2}, s{sNt}, 192")
    for i in range(3):
        A.e(f"v_add_u32 {vr(vT[4])}, {64*i}, {vr(vLane)}")
        A.e(f"v_mul_u32_u24 {vr(vT[5])}, 5462, {vr(vT[4])}"); A.e(f"v_lshrrev_b32 {vr(vT[5])}, 16, {vr(vT[5])}")
        A.e(f"v_mul_u32_u24 {vr(vT[6])}, 12, {vr(vT[5])}"); A.e(f"v_sub_u32 {vr(vT[6])}, {vr(vT[4])}, {vr(vT[6])}")
        A.e(f"v_lshrrev_b32 {vr(vT[7])}, 1, {vr(vT[5])}"); A.e(f"v_and_b32 {vr(vT[7])}, 2, {vr(vT[7])}")
        A.e(f"v_xor_b32 {vr(vT[6])}, {vr(vT[6])}, {vr(vT[7])}")
        A.e(f"v_mul_u32_u24 {vr(vT[5])}, 1152, {vr(vT[5])}"); A.e(f"v_lshl_add_u32 {vr(vT[5])}, {vr(vT[6])}, 4, {vr(vT[5])}")
        A.e(f"v_add_u32 {vr(vWA+i)}, s{sT2}, {vr(vT[5])}")
        if i: A.e(f"v_subrev_u32 {vr(vWA+i)}, {1024*i}, {vr(vWA+i)}")
    A.e("s_mov_b32 s10, 663552"); A.e("s_mov_b32 s11, 0x20000")
    A.e(f"s_mov_b32 s14, {2048*1152}"); A.e("s_mov_b32 s15, 0x20000")
    A.e(f"s_mov_b32 s22, {WS_BYTES}"); A.e("s_mov_b32 s23, 0x20000")
    A.e("s_waitcnt lgkmcnt(0)")
    A.e("s_mov_b32 s8, s4"); A.e("s_mov_b32 s9, s5"); A.e("s_mov_b32 s12, s6"); A.e("s_mov_b32 s13, s7")
    A.e("s_mov_b32 s20, s18"); A.e("s_mov_b32 s21, s19")
    for i in range(12):
        A.e(f"s_movk_i32 s{sSo}, {4096*i}") if 4096*i < 32768 else A.e(f"s_mov_b32 s{sSo}, {4096*i}")
        A.e(f"buffer_load_dwordx4 {vr(vO+4*i,4)}, {vr(vT[1])}, s[20:23], s{sSo} offen")
    for sg in range(2):
        for jj in range(2):
            A.e(f"s_mov_b32 s{sSo}, {sg*PQ_STILE}")
            A.e(f"buffer_load_dwordx2 {vr(vCb+(sg*2+jj)*2,2)}, {vr(vT[3])}, s[20:23], s{sSo} offen offset:{jj*512}")
    A.e(f"s_mul_i32 s{sT0}, s{sKh}, 288"); A.e(f"s_lshl_b32 s{sT1}, s{sSp}, 4"); A.e(f"s_add_u32 s{sT0}, s{sT0}, s{sT1}")
    A.e(f"s_mul_i32 s{sM0}, s{sT0}, 192"); A.e(f"s_mul_i32 s{sT1}, s{sT0}, 1152")
    xl = [(sg, p) for p in range(8) for sg in range(2)]
    xi = 0
    for t in range(9):
        for _ in range(2):
            if xi < 16:
                sg, p = xl[xi]; xi += 1
                A.e(f"s_mov_b32 s{sSo}, {sg*PQ_STILE + p*1024}")
                A.e(f"buffer_load_dwordx4 {vr(X(sg,p)+2,4)}, {vr(vT[2])}, s[20:23], s{sSo} offen")
        A.e(f"s_mov_b32 m0, s{sM0}")
        A.e(f"s_add_u32 s{sM0}, s{sM0}, {32*192}")
        A.e(f"buffer_load_dwordx4 {vr(vWA)}, s[8:11], s{sT1} offen lds")
        A.e(f"buffer_load_dwordx4 {vr(vWA+1)}, s[8:11], s{sT1} offen offset:1024 lds")
        A.e(f"buffer_load_dwordx4 {vr(vWA+2)}, s[8:11], s{sT1} offen offset:2048 lds")
        A.e(f"s_add_u32 s{sT1}, s{sT1}, {32*1152}")
    if stamps: A.e(f"s_memtime s[{sSt+2}:{sSt+3}]")
    A.e(f"v_and_b32 {vr(vL15)}, 15, {vr(vLane)}"); A.e(f"v_lshrrev_b32 {vr(vG)}, 4, {vr(vLane)}")
    A.e(f"v_bfe_u32 {vr(vR)}, {vr(vLane)}, 2, 2"); A.e(f"v_and_b32 {vr(vC)}, 3, {vr(vLane)}")
    A.e(f"s_mul_i32 s{sT0}, s{sKh}, 55296")
    A.e(f"v_lshl_add_u32 {vr(vT[0])}, {vr(vG)}, 2, {vr(vR)}"); A.e(f"v_mul_u32_u24 {vr(vT[0])}, 192, {vr(vT[0])}")
    A.e(f"v_lshl_add_u32 {vr(vT[0])}, {vr(vC)}, 3, {vr(vT[0])}"); A.e(f"v_add_u32 {vr(vT[0])}, s{sT0}, {vr(vT[0])}")
    A.e(f"v_and_b32 {vr(vT[1])}, 1, {vr(vG)}")
    A.e(f"v_lshl_add_u32 {vr(vB)}, {vr(vT[1])}, 5, {vr(vT[0])}")
    A.e(f"v_xor_b32 {vr(vT[1])}, 1, {vr(vT[1])}"); A.e(f"v_lshl_add_u32 {vr(vB+1)}, {vr(vT[1])}, 5, {vr(vT[0])}")
    A.e(f"v_mul_u32_u24 {vr(vT[0])}, 36, {vr(vR)}"); A.e(f"v_add3_u32 {vr(vT[0])}, {vr(vT[0])}, {vr(vG)}, 16"); A.e(f"v_mul_u32_u24 {vr(vT[0])}, 192, {vr(vT[0])}")
    A.e(f"v_lshl_add_u32 {vr(vT[0])}, {vr(vC)}, 3, {vr(vT[0])}"); A.e(f"v_add_u32 {vr(vT[0])}, s{sT0}, {vr(vT[0])}")
    A.e(f"v_and_b32 {vr(vT[1])}, 1, {vr(vR)}")
    A.e(f"v_lshl_add_u32 {vr(vE)}, {vr(vT[1])}, 5, {vr(vT[0])}")
    A.e(f"v_xor_b32 {vr(vT[1])}, 1, {vr(vT[1])}"); A.e(f"v_lshl_add_u32 {vr(vE+1)}, {vr(vT[1])}, 5, {vr(vT[0])}")
    A.e(f"s_mul_i32 s{sT0}, s{sKh}, 12800"); A.e(f"s_add_u32 s{sT0}, s{sT0}, {KVI}")
    q = vT[0]; gp = vT[1]; sa = vT[2]; sb = vT[3]
    A.e(f"v_and_b32 {vr(q)}, 3, {vr(vL15)}"); A.e(f"v_lshrrev_b32 {vr(gp)}, 2, {vr(vL15)}")
    A.e(f"v_mov_b32 {vr(sa)}, 19"); A.e(f"v_mov_b32 {vr(sb)}, 19")
    A.e(f"v_mov_b32 {vr(vT[4])}, 18")
    A.e(f"v_cmp_eq_u32 vcc, 1, {vr(q)}"); A.e("s_nop 1"); A.e(f"v_cndmask_b32 {vr(sa)}, {vr(sa)}, {vr(vT[4])}, vcc")
    A.e(f"v_cmp_eq_u32 vcc, 2, {vr(q)}"); A.e("s_nop 1"); A.e(f"v_cndmask_b32 {vr(sb)}, {vr(sb)}, {vr(vT[4])}, vcc")
    A.e(f"v_add_u32 {vr(vT[4])}, 16, {vr(gp)}")
    A.e(f"v_cmp_gt_u32 vcc, 5, {vr(vL15)}"); A.e(f"s_mov_b64 s[{sMk}:{sMk+1}], vcc")
    A.e(f"v_cmp_eq_u32 vcc, 0, {vr(q)}"); A.e(f"s_and_b64 s[{sMk}:{sMk+1}], s[{sMk}:{sMk+1}], vcc")
    A.e("s_nop 1"); A.e(f"v_cndmask_b32 {vr(sa)}, {vr(sa)}, {vr(vT[4])}, s[{sMk}:{sMk+1}]")
    A.e(f"v_add_u32 {vr(vT[4])}, 14, {vr(gp)}")
    A.e(f"v_cmp_lt_u32 s[{sMk}:{sMk+1}], 7, {vr(vL15)}"); A.e(f"s_and_b64 s[{sMk}:{sMk+1}], s[{sMk}:{sMk+1}], vcc")
    A.e("s_nop 1"); A.e(f"v_cndmask_b32 {vr(sb)}, {vr(sb)}, {vr(vT[4])}, s[{sMk}:{sMk+1}]")
    i40 = vT[5]; a40 = vT[6]; b40 = vT[7]
    A.e(f"v_mul_u32_u24 {vr(i40)}, 40, {vr(vL15)}"); A.e(f"v_add_u32 {vr(i40)}, s{sT0}, {vr(i40)}")
    A.e(f"v_mul_u32_u24 {vr(a40)}, 40, {vr(sa)}"); A.e(f"v_add_u32 {vr(a40)}, s{sT0}, {vr(a40)}")
    A.e(f"v_mul_u32_u24 {vr(b40)}, 40, {vr(sb)}"); A.e(f"v_add_u32 {vr(b40)}, s{sT0}, {vr(b40)}")
    A.e(f"v_lshl_add_u32 {vr(vM0)}, {vr(vG)}, 3, {vr(i40)}"); A.e(f"v_lshl_add_u32 {vr(vM1A)}, {vr(vG)}, 3, {vr(a40)}"); A.e(f"v_lshl_add_u32 {vr(vM1B)}, {vr(vG)}, 3, {vr(b40)}")
    A.e(f"s_add_u32 s{sT1}, s{sT0}, 760"); A.e(f"v_mov_b32 {vr(vT[0])}, s{sT1}")
    for gam in range(4):
        A.e(f"v_cmp_eq_u32 vcc, {gam}, {vr(vG)}"); A.e("s_nop 1")
        A.e(f"v_cndmask_b32 {vr(vC0+gam)}, {vr(vT[0])}, {vr(i40)}, vcc")
        A.e(f"v_cndmask_b32 {vr(vC1A+gam)}, {vr(vT[0])}, {vr(a40)}, vcc")
        A.e(f"v_cndmask_b32 {vr(vC1B+gam)}, {vr(vT[0])}, {vr(b40)}, vcc")
    A.e(f"v_cmp_gt_u32 s[{sG2}:{sG2+1}], 2, {vr(vG)}")
    A.e(f"v_mov_b32 {vr(vEpsC)}, 0"); A.e(f"v_mov_b32 {vr(vEpsC+1)}, {EPS:#x}"); A.e(f"v_mov_b32 {vr(vEpsC+2)}, {EPS:#x}"); A.e(f"v_mov_b32 {vr(vEpsC+3)}, 0")
    for i in range(48): A.e(f"v_accvgpr_write_b32 {ar(aAcc+i)}, 0")
    A.e(f"v_mul_u32_u24 {vr(vT[0])}, 13108, v0"); A.e(f"v_lshrrev_b32 {vr(vT[0])}, 16, {vr(vT[0])}")
    A.e(f"v_mul_u32_u24 {vr(vT[1])}, 5, {vr(vT[0])}"); A.e(f"v_sub_u32 {vr(vT[1])}, v0, {vr(vT[1])}")
    A.e(f"v_mul_u32_u24 {vr(vT[0])}, 800, {vr(vT[0])}"); A.e(f"v_lshl_add_u32 {vr(vT[0])}, {vr(vT[1])}, 3, {vr(vT[0])}")
    A.e(f"v_mov_b32 {vr(vT[2])}, 0"); A.e(f"v_mov_b32 {vr(vT[3])}, 0")
    assert vT[3] == vT[2] + 1 and vT[2] % 2 == 0
    A.e(f"v_cmp_gt_u32 vcc, 160, v0"); A.e(f"s_and_saveexec_b64 s[{sExec}:{sExec+1}], vcc")
    A.e(f"v_add_u32 {vr(vT[0])}, {KVI+760}, {vr(vT[0])}")
    A.e(f"ds_write_b64 {vr(vT[0])}, {vr(vT[2],2)}")
    A.e(f"s_mov_b64 exec, s[{sExec}:{sExec+1}]")
    A.e("s_waitcnt vmcnt(47)")
    for i in range(12):
        t0 = vT[4 + (i & 1)*2]; t1 = t0 + 1
        A.e(f"v_add_u32 {vr(t0)}, {256*i}, v0")
        A.e(f"v_mul_u32_u24 {vr(t1)}, 690, {vr(t0)}"); A.e(f"v_lshrrev_b32 {vr(t1)}, 16, {vr(t1)}"); A.e(f"v_mul_u32_u24 {vr(t1)}, 40, {vr(t1)}")
        A.e(f"v_lshl_add_u32 {vr(t0)}, {vr(t0)}, 3, {vr(t1)}")
        s = vO + 4*i
        A.e(f"v_cvt_pk_bf16_f32 {vr(s)}, {vr(s)}, {vr(s+1)}"); A.e(f"v_cvt_pk_bf16_f32 {vr(s+1)}, {vr(s+2)}, {vr(s+3)}")
        A.e(f"ds_write_b64 {vr(t0)}, {vr(s,2)} offset:{KVI}") if KVI < 65536 else (A.e(f"v_add_u32 {vr(t0)}, {KVI}, {vr(t0)}"), A.e(f"ds_write_b64 {vr(t0)}, {vr(s,2)}"))
    A.e("s_waitcnt vmcnt(0)")
    for sg in range(2):
        for p in range(8):
            src = vCb + (sg*2 + (p >> 2))*2
            A.e(f"v_pk_mov_b32 {vr(X(sg,p),2)}, {vr(src,2)}, {vr(src,2)} op_sel:[0,1]")
            A.e(f"v_pk_mov_b32 {vr(X(sg,p)+6,2)}, {vr(src,2)}, {vr(src,2)} op_sel:[0,1]")
    A.e("s_waitcnt lgkmcnt(0)")
    A.e("s_barrier")
    if stamps: A.e(f"s_memtime s[{sSt+4}:{sSt+5}]")

    def kv_reads(p):
        st = aKV + (p & 1)*16; gam = p & 3; hA = 2*p*800; hB = hA + 800
        return [
            f"ds_read_b64 {ar(st+0,2)}, {vr(vC0+gam)} offset:{hA+32}",
            f"ds_read_b64 {ar(st+2,2)}, {vr(vM0)} offset:{hA}",
            f"ds_read_b64 {ar(st+8,2)}, {vr(vC1A+gam)} offset:{hA+32}",
            f"ds_read_b64 {ar(st+10,2)}, {vr(vM1A)} offset:{hA}",
            f"ds_read_b64 {ar(st+4,2)}, {vr(vM0)} offset:{hB+8}",
            f"ds_read_b64 {ar(st+6,2)}, {vr(vC0+gam)} offset:{hB}",
            f"ds_read_b64 {ar(st+12,2)}, {vr(vM1B)} offset:{hB+8}",
            f"ds_read_b64 {ar(st+14,2)}, {vr(vC1B+gam)} offset:{hB}",
        ]
    def wo_reads(p):
        st = aWO + (p & 1)*24; l = []
        for tau in range(6):
            m, h = tau >> 1, tau & 1
            if p < 8:
                for sec in range(2):
                    kap = (p & 1) ^ sec
                    l.append(f"ds_read_b64_tr_b16 {ar(st+4*tau+2*sec,2)}, {vr(vB+(h^kap))} offset:{(36*p + 20*sec)*192 + 64*m}")
            else:
                for sec in range(2):
                    l.append(f"ds_read_b64_tr_b16 {ar(st+4*tau+2*sec,2)}, {vr(vE+h)} offset:{sec*144*192 + 64*m}")
        return l
    def O(sg, p): return vO + ((p & 1)*2 + sg)*12
    def o_mfmas(p):
        st = aKV + (p & 1)*16; l = []
        for sg in range(2):
            o = O(sg, p); x = X(sg, p)
            l.append(f"v_mfma_f32_16x16x32_bf16 {vr(o+8,4)}, {ar(st+8,4)}, {vr(x,4)}, {vr(vEpsC,4)}")
            l.append(f"v_mfma_f32_16x16x32_bf16 {vr(o,4)}, {ar(st,4)}, {vr(x,4)}, 0")
            l.append(f"v_mfma_f32_16x16x32_bf16 {vr(o+4,4)}, {ar(st+4,4)}, {vr(x+4,4)}, 0")
            l.append(f"v_mfma_f32_16x16x32_bf16 {vr(o+8,4)}, {ar(st+12,4)}, {vr(x+4,4)}, {vr(o+8,4)}")
        return l
    def valu(p):
        l = []
        for sg in range(2):
            o = O(sg, p); rA = vRc + sg*4; rB = rA + 2; rX = rA + 1; f = vOf + ((p & 1)*2 + sg)*4
            l += [f"v_rcp_f32 {vr(rA)}, {vr(o+9)}", f"v_rcp_f32 {vr(rB)}, {vr(o+10)}"]
            l += [f"s_nop 0"]
            l += [f"v_pk_mul_f32 {vr(o,2)}, {vr(o,2)}, {vr(rA,2)} op_sel_hi:[1,0]", f"v_pk_mul_f32 {vr(o+2,2)}, {vr(o+2,2)}, {vr(rA,2)} op_sel_hi:[1,0]"]
            l += [f"v_pk_mul_f32 {vr(o+4,2)}, {vr(o+4,2)}, {vr(rB,2)} op_sel_hi:[1,0]", f"v_pk_mul_f32 {vr(o+6,2)}, {vr(o+6,2)}, {vr(rB,2)} op_sel_hi:[1,0]"]
            l += [f"v_cndmask_b32 {vr(rX)}, {vr(rB)}, {vr(rA)}, s[{sG2}:{sG2+1}]"]
            l += [f"v_cvt_pk_bf16_f32 {vr(f)}, {vr(o)}, {vr(o+1)}", f"v_cvt_pk_bf16_f32 {vr(f+1)}, {vr(o+2)}, {vr(o+3)}",
                  f"v_cvt_pk_bf16_f32 {vr(f+2)}, {vr(o+4)}, {vr(o+5)}", f"v_cvt_pk_bf16_f32 {vr(f+3)}, {vr(o+6)}, {vr(o+7)}"]
            l += [f"v_mul_f32 {vr(vEx+sg*8+p)}, {vr(o+8)}, {vr(rX)}"]
        return l
    def main_mfmas(p):
        st = aWO + (p & 1)*24; l = []
        for tau in range(6):
            for sg in range(2):
                d = ar(aAcc + (sg*6 + tau)*4, 4); f = vOf + ((p & 1)*2 + sg)*4
                l.append(f"v_mfma_f32_16x16x32_bf16 {d}, {ar(st+4*tau,4)}, {vr(f,4)}, {d}")
        return l

    for i in kv_reads(0): A.e(i)
    for p in range(0, 10):
        if p < 8:
            A.e("s_waitcnt lgkmcnt(0)") if p == 0 else None
            om = o_mfmas(p)
        if p < 8:
            if p > 0: A.e("s_waitcnt lgkmcnt(12)")
            for i in om: A.e(i)
        if p < 7:
            for i in kv_reads(p+1): A.e(i)
        if p == 8:
            for sg in range(2):
                f = vOf + (0*2 + sg)*4
                pass
        if p >= 1:
            if p - 1 == 8:
                A.e("s_waitcnt lgkmcnt(0)")
            else:
                A.e(f"s_waitcnt lgkmcnt({8 if p < 7 else 0})")
            mm = main_mfmas(p-1)
        else: mm = []
        if p <= 8:
            wr = wo_reads(p)
        else: wr = []
        vl = valu(p) if p < 8 else []
        if p == 8:
            vl = []
            for sg in range(2):
                f = vOf + sg*4
                for h in range(4): vl.append(f"v_cvt_pk_bf16_f32 {vr(f+h)}, {vr(vEx+sg*8+2*h)}, {vr(vEx+sg*8+2*h+1)}")
        if mm:
            k = 0; fill = []
            fill = wr[:]
            vq = vl[:]
            for m, ins in enumerate(mm):
                A.e(ins)
                for _ in range(1):
                    if fill: A.e(fill.pop(0))
                if m >= 1:
                    for _ in range(3):
                        if vq: A.e(vq.pop(0))
            for i in fill: A.e(i)
            for i in vq: A.e(i)
        else:
            for i in wr: A.e(i)
            A.nop(8)
            for i in vl: A.e(i)
        A.nop(1)
    if stamps: A.e(f"s_memtime s[{sSt+6}:{sSt+7}]")
    A.nop(8)
    A.e(f"s_mul_i32 s{sT0}, s{sWave}, 6144"); A.e(f"s_add_u32 s{sT0}, s{sT0}, {XB}")
    A.e(f"v_lshlrev_b32 {vr(vT[0])}, 4, {vr(vLane)}"); A.e(f"v_add_u32 {vr(vT[1])}, s{sT0}, {vr(vT[0])}")
    A.e(f"s_xor_b32 s{sT1}, s{sWave}, 2"); A.e(f"s_mul_i32 s{sT1}, s{sT1}, 6144"); A.e(f"s_add_u32 s{sT1}, s{sT1}, {XB}")
    A.e(f"v_add_u32 {vr(vT[2])}, s{sT1}, {vr(vT[0])}")
    A.e(f"s_cmp_eq_u32 s{sKh}, 0"); A.e(f"s_cbranch_scc0 {name}_k1")
    for tau in range(6): A.e(f"ds_write_b128 {vr(vT[1])}, {ar(aAcc+(6+tau)*4,4)} offset:{tau*1024}")
    for i in range(24): A.e(f"v_accvgpr_read_b32 {vr(vX+i)}, {ar(aAcc+i)}")
    A.e(f"s_branch {name}_k2")
    A.label(f"{name}_k1")
    for tau in range(6): A.e(f"ds_write_b128 {vr(vT[1])}, {ar(aAcc+tau*4,4)} offset:{tau*1024}")
    for i in range(24): A.e(f"v_accvgpr_read_b32 {vr(vX+i)}, {ar(aAcc+24+i)}")
    A.label(f"{name}_k2")
    A.e("s_waitcnt lgkmcnt(0)"); A.e("s_barrier")
    for tau in range(6): A.e(f"ds_read_b128 {vr(vX+24+tau*4,4)}, {vr(vT[2])} offset:{tau*1024}")
    A.e(f"s_lshl_b32 s{sT0}, s{sMt}, 6"); A.e(f"s_lshl_b32 s{sT1}, s{sSp}, 5"); A.e(f"s_add_u32 s{sT0}, s{sT0}, s{sT1}"); A.e(f"s_lshl_b32 s{sT1}, s{sKh}, 4"); A.e(f"s_add_u32 s{sT0}, s{sT0}, s{sT1}")
    A.e(f"v_add_u32 {vr(vT[3])}, s{sT0}, {vr(vL15)}"); A.e(f"v_mul_u32_u24 {vr(vT[3])}, 1152, {vr(vT[3])}")
    A.e(f"s_mul_i32 s{sT0}, s{sNt}, 192"); A.e(f"v_lshl_add_u32 {vr(vT[3])}, {vr(vG)}, 3, {vr(vT[3])}"); A.e(f"v_add_u32 {vr(vT[3])}, s{sT0}, {vr(vT[3])}")
    A.e("s_waitcnt lgkmcnt(0)")
    for tau in range(6):
        for r in range(4): A.e(f"v_add_f32 {vr(vX+tau*4+r)}, {vr(vX+tau*4+r)}, {vr(vX+24+tau*4+r)}")
        A.e(f"v_cvt_pk_bf16_f32 {vr(vX+48+tau*2)}, {vr(vX+tau*4)}, {vr(vX+tau*4+1)}")
        A.e(f"v_cvt_pk_bf16_f32 {vr(vX+48+tau*2+1)}, {vr(vX+tau*4+2)}, {vr(vX+tau*4+3)}")
        A.e(f"buffer_store_dwordx2 {vr(vX+48+tau*2,2)}, {vr(vT[3])}, s[12:15], 0 offen offset:{tau*32}")
    if stamps:
        A.e("s_waitcnt vmcnt(0)")
        A.e(f"s_memtime s[{sSt+8}:{sSt+9}]"); A.e(f"s_memrealtime s[{sSt+12}:{sSt+13}]")
        A.e("s_waitcnt lgkmcnt(0)")
        for i in (2, 4, 6, 8): A.e(f"s_sub_u32 s{sSt+i}, s{sSt+i}, s{sSt}")
        A.e(f"s_lshl_b32 s{sT0}, s2, 3"); A.e(f"s_add_u32 s{sT0}, s{sT0}, s{sWave}"); A.e(f"s_lshl_b32 s{sT0}, s{sT0}, 4"); A.e(f"s_add_u32 s{sT0}, s{sT0}, 0x500000")
        A.e(f"v_mov_b32 {vr(vX)}, s{sSt+2}"); A.e(f"v_mov_b32 {vr(vX+1)}, s{sSt+4}"); A.e(f"v_mov_b32 {vr(vX+2)}, s{sSt+6}"); A.e(f"v_mov_b32 {vr(vX+3)}, s{sSt+8}")
        A.e(f"v_mov_b32 {vr(vT[0])}, s{sT0}")
        A.e(f"v_cmp_eq_u32 vcc, 0, {vr(vLane)}"); A.e(f"s_and_saveexec_b64 s[{sExec}:{sExec+1}], vcc")
        A.e(f"global_store_dwordx4 {vr(vT[0])}, {vr(vX,4)}, s[18:19]")
        A.e(f"v_mov_b32 {vr(vX+4)}, s{sSt+10}"); A.e(f"v_mov_b32 {vr(vX+5)}, s{sSt+12}")
        A.e(f"v_add_u32 {vr(vT[0])}, 0x40000, {vr(vT[0])}")
        A.e(f"global_store_dwordx2 {vr(vT[0])}, {vr(vX+4,2)}, s[18:19]")
    A.label(f"{name}_end")
    A.e("s_endpgm")
    return nv, na
```

```python
from asmlib import *
import os, sys

PQ_STILE = 18432
KVS_OFF = 2359296
KVS_HEAD = 1600
KVS_BYTES = 32*KVS_HEAD
CNT_OFF = KVS_OFF + KVS_BYTES
WS_BYTES = CNT_OFF + 24*128
XST = 16384; WST = 24576
WBASE = 3*XST
WO_BYTES = 110592
EX = WO_BYTES
STG = EX + 36864
KVI = WO_BYTES
XB = KVI + 25600
OT = XB + 24576
LDS_BYTES = 163840
assert STG + 6400 <= LDS_BYTES and XB + 24576 <= LDS_BYTES
LOG2E = 0x3fb8aa3b
NLOG2E = 0xbfb8aa3b
EPS = 0x358637bd
POLL_MAX = 20000
NPRE = int(os.environ.get('NPRE', '2'))

class Lgkm:
    def __init__(self, A): self.A = A; self.q = []; self.done = 0
    def issue(self, ins, tag): self.A.e(ins); self.q.append(tag)
    def other(self): self.q.append(None)
    def need(self, tag):
        idx = max(i for i, t in enumerate(self.q) if t == tag)
        if idx < self.done: return
        n = len(self.q) - 1 - idx
        self.A.e(f"s_waitcnt lgkmcnt({min(n, 15)})")
        self.done = len(self.q) - min(n, 15)
    def all(self):
        self.A.e("s_waitcnt lgkmcnt(0)"); self.done = len(self.q)

def interleave(A, main, fill, start=0, every=None, tail=True):
    n = len(main) - start
    slots = [[] for _ in main]
    if fill:
        for k, g in enumerate(fill): slots[start + (k*n)//len(fill)].append(g)
    for i, m in enumerate(main):
        if m: A.e(m)
        for g in slots[i]:
            for x in g: A.e(x)

def gen(A, name, opts):
    stamps = "stamps" in opts
    sWave = 24; sXcd = 25; sJ = 26; sMt = 27; sG = 28; sT0 = 29; sT1 = 30; sT2 = 31; sT3 = 32
    sKh = 33; sSp = 34; sIt = 35; sMX = 36; sMW = 37; sNt = 38; sXo = 39; sWo = 40
    sBaseW = 41; sD = 42; sDelta = 43; sTg = 44; sRh = 45; sU = 46
    sL2 = 50
    sEp = 52
    sExec = 54; sM0 = 56; sM1 = 58; sG2 = 60
    sX = 62; sNb = 63; sMt2 = 64; sWm = 65; sWs = 66; sIsQ = 67
    PX, PW, PWO, POUT, PDBG, PWS = 68, 70, 72, 74, 76, 78
    SX, SW, SWS, SWO, SOUT = 8, 12, 20, 80, 84
    sSt = 88
    def stamp(k):
        if stamps: A.e(f"s_memtime s[{sSt+2*k}:{sSt+2*k+1}]")
    vLane = 1; vT = [2, 3, 4, 5, 6, 7]; vL15 = 8; vG = 9; vR = 10; vC = 11
    vXA = 12; vW = 16; vRX = 22; vRW = 26; vFlag = 31; vFlagA = 32; vNL = 34
    F = [(36, 52), (72, 88)]
    vAcc = 108; vP = 180; vOnes = 220
    vWA = 224; vB = 227; vE = 229; vM0 = 231; vM1A = 232; vM1B = 233; vC0 = 234; vC1A = 238; vC1B = 242
    vXad = 246; vCad = 247; vKad = 248; vKL = 249; vOad = 250; vOT = 253
    vA2 = 12; vO = 60; vOf = 112; vEx = 128; vRc = 144; vEpsC = 152; vF = 156
    aX = 0; aCb = 128; aKV = 136; aWO = 168
    def acc(t, j): return vAcc + (t*4 + j)*4 if t < 4 else vAcc + 64 + j*4
    def X(sg, p): return aX + (sg*8 + p)*8

    A.label(name)
    A.e("s_cmp_ge_u32 s2, 256"); A.e(f"s_cbranch_scc1 {name}_end")
    stamp(0)
    if stamps: A.e("s_memrealtime s[16:17]")
    A.e(f"s_load_dwordx8 s[{PX}:{PX+7}], s[0:1], 0")
    A.e(f"s_load_dwordx4 s[{PDBG}:{PDBG+3}], s[0:1], 32")
    A.e(f"v_lshrrev_b32 {vr(vT[0])}, 6, v0"); A.e(f"v_and_b32 {vr(vLane)}, 63, v0")
    A.e(f"s_and_b32 s{sXcd}, s2, 7")
    A.e(f"v_readfirstlane_b32 s{sWave}, {vr(vT[0])}")
    A.e(f"s_lshr_b32 s{sJ}, s2, 3")
    A.e(f"s_cmp_lt_u32 s{sJ}, 8"); A.e(f"s_cbranch_scc1 {name}_helper")
    A.e(f"s_sub_u32 s{sT3}, s{sJ}, 8")
    A.e(f"s_and_b32 s{sT0}, s{sXcd}, 3"); A.e(f"s_lshl_b32 s{sT0}, s{sT0}, 2"); A.e(f"s_and_b32 s{sT1}, s{sT3}, 3"); A.e(f"s_add_u32 s{sMt}, s{sT0}, s{sT1}")
    A.e(f"s_mov_b32 s{sXo}, 0")
    A.e(f"s_lshr_b32 s{sT2}, s{sXcd}, 2")
    A.e(f"s_cmp_ge_u32 s{sT3}, 16"); A.e(f"s_cselect_b32 s{sIsQ}, 1, 0"); A.e(f"s_cbranch_scc1 {name}_setq")
    A.e(f"s_lshl_b32 s{sT2}, s{sT2}, 2"); A.e(f"s_lshr_b32 s{sT0}, s{sT3}, 2"); A.e(f"s_add_u32 s{sG}, s{sT2}, s{sT0}")
    A.e(f"s_mul_i32 s{sT0}, s{sG}, 144"); A.e(f"s_and_b32 s{sT0}, s{sT0}, 0xffffffc0"); A.e(f"s_add_u32 s{sBaseW}, s{sT0}, 1152")
    A.e(f"s_movk_i32 s{sD}, 960")
    A.e(f"s_and_b32 s{sDelta}, s{sG}, 3"); A.e(f"s_lshl_b32 s{sDelta}, s{sDelta}, 1")
    A.e(f"s_branch {name}_setc")
    A.label(f"{name}_setq")
    A.e(f"s_lshl_b32 s{sT2}, s{sT2}, 1"); A.e(f"s_sub_u32 s{sT0}, s{sT3}, 16"); A.e(f"s_lshr_b32 s{sT0}, s{sT0}, 2"); A.e(f"s_add_u32 s{sG}, s{sT2}, s{sT0}")
    A.e(f"s_mul_i32 s{sT0}, s{sG}, 288"); A.e(f"s_and_b32 s{sBaseW}, s{sT0}, 0xffffffc0")
    A.e(f"s_sub_u32 s{sDelta}, s{sT0}, s{sBaseW}"); A.e(f"s_lshr_b32 s{sDelta}, s{sDelta}, 3")
    A.e(f"s_mov_b32 s{sD}, 0")
    A.label(f"{name}_setc")
    A.e(f"s_lshl_b32 s{sT0}, s{sMt}, 7"); A.e(f"s_lshl_b32 s{sT1}, s{sWave}, 5"); A.e(f"s_add_u32 s{sT0}, s{sT0}, s{sT1}")
    A.e(f"v_lshrrev_b32 {vr(vT[0])}, 3, {vr(vLane)}"); A.e(f"v_and_b32 {vr(vT[1])}, 7, {vr(vLane)}"); A.e(f"v_xor_b32 {vr(vT[1])}, {vr(vT[1])}, {vr(vT[0])}")
    A.e(f"v_add_u32 {vr(vT[0])}, s{sT0}, {vr(vT[0])}"); A.e(f"v_mul_u32_u24 {vr(vT[0])}, 1152, {vr(vT[0])}")
    A.e(f"v_lshl_add_u32 {vr(vXA)}, {vr(vT[1])}, 4, {vr(vT[0])}")
    for i in range(1, 4): A.e(f"v_add_u32 {vr(vXA+i)}, {8192*i}, {vr(vXA)}")
    A.e(f"s_lshl_b32 s{sT1}, s{sWave}, 4"); A.e(f"s_mul_i32 s{sT1}, s{sT1}, 3456"); A.e(f"s_add_u32 s{sT1}, s{sT1}, s{sBaseW}")
    for i in range(3):
        L, row, pos, t = vT[0], vT[1], vT[2], vT[3]
        if i: A.e(f"v_add_u32 {vr(L)}, {64*i}, {vr(vLane)}")
        Lr = L if i else vLane
        A.e(f"v_mul_u32_u24 {vr(row)}, 2731, {vr(Lr)}"); A.e(f"v_lshrrev_b32 {vr(row)}, 16, {vr(row)}")
        A.e(f"v_mul_u32_u24 {vr(pos)}, 24, {vr(row)}"); A.e(f"v_sub_u32 {vr(pos)}, {vr(Lr)}, {vr(pos)}")
        A.e(f"v_and_b32 {vr(t)}, 2, {vr(row)}"); A.e(f"v_xor_b32 {vr(pos)}, {vr(pos)}, {vr(t)}")
        A.e(f"v_mul_u32_u24 {vr(row)}, 3456, {vr(row)}"); A.e(f"v_add_u32 {vr(row)}, s{sT1}, {vr(row)}")
        for grp in range(2):
            k = 3*grp + i
            if grp: A.e(f"v_xor_b32 {vr(pos)}, 4, {vr(pos)}")
            A.e(f"v_cmp_le_u32 vcc, 12, {vr(pos)}")
            A.e(f"v_lshl_add_u32 {vr(vW+k)}, {vr(pos)}, 4, {vr(row)}")
            A.e(f"v_mov_b32 {vr(t)}, s{sD}")
            adj = grp*8*3456 - 1024*(k % 4)
            A.e(f"v_cndmask_b32 {vr(t)}, 0, {vr(t)}, vcc")
            if adj: A.e(f"v_add_u32 {vr(vW+k)}, {adj & 0xffffffff:#x}, {vr(vW+k)}")
            A.e(f"v_add_u32 {vr(vW+k)}, {vr(vW+k)}, {vr(t)}")
    A.e(f"s_lshl_b32 s{sMX}, s{sWave}, 12")
    A.e(f"s_mul_i32 s{sMW}, s{sWave}, 6144"); A.e(f"s_add_u32 s{sMW}, s{sMW}, {WBASE}")
    def srd_consts():
        A.e(f"s_mov_b32 s{SX+2}, 2359296"); A.e(f"s_mov_b32 s{SX+3}, 0x20000")
        A.e(f"s_mov_b32 s{SW+2}, 1990656"); A.e(f"s_mov_b32 s{SW+3}, 0x20000")
    def srd_bases():
        A.e(f"s_mov_b32 s{SX}, s{PX}"); A.e(f"s_mov_b32 s{SX+1}, s{PX+1}"); A.e(f"s_mov_b32 s{SW}, s{PW}"); A.e(f"s_mov_b32 s{SW+1}, s{PW+1}")
    def srd_rest():
        A.e(f"s_mov_b32 s{SWS}, s{PWS}"); A.e(f"s_mov_b32 s{SWS+1}, s{PWS+1}"); A.e(f"s_mov_b32 s{SWS+2}, {WS_BYTES}"); A.e(f"s_mov_b32 s{SWS+3}, 0x20000")
        A.e(f"s_mov_b32 s{SWO}, s{PWO}"); A.e(f"s_mov_b32 s{SWO+1}, s{PWO+1}"); A.e(f"s_mov_b32 s{SWO+2}, 663552"); A.e(f"s_mov_b32 s{SWO+3}, 0x20000")
        A.e(f"s_mov_b32 s{SOUT}, s{POUT}"); A.e(f"s_mov_b32 s{SOUT+1}, s{POUT+1}"); A.e(f"s_mov_b32 s{SOUT+2}, 2359296"); A.e(f"s_mov_b32 s{SOUT+3}, 0x20000")
    srd_consts()
    A.e("s_waitcnt lgkmcnt(0)")
    srd_bases()

    def dma_x(st):
        g = [[f"s_add_u32 m0, s{sMX}, {st*XST}", f"s_mul_i32 s{sWo}, s{sXo}, 1728"]]
        for i in range(4): g.append([f"buffer_load_dwordx4 {vr(vXA+i)}, s[{SX}:{SX+3}], s{sXo} offen offset:{1024*i} lds"])
        return g
    def dma_w(st):
        g = [[f"s_add_u32 m0, s{sMW}, {st*WST}", f"s_add_u32 s{sXo}, s{sXo}, 128"]]
        for k in range(4): g.append([f"buffer_load_dwordx4 {vr(vW+k)}, s[{SW}:{SW+3}], s{sWo} offen offset:{1024*k} lds"])
        g.append([f"s_add_u32 m0, s{sMW}, {st*WST+4096}", f"s_nop 0"])
        for k in range(4, 6): g.append([f"buffer_load_dwordx4 {vr(vW+k)}, s[{SW}:{SW+3}], s{sWo} offen offset:{1024*(k-4)} lds"])
        return g
    def dma_chunk(st):
        for g in dma_x(st) + dma_w(st):
            for i in g: A.e(i)
    def lane_decode():
        A.e(f"v_and_b32 {vr(vL15)}, 15, {vr(vLane)}"); A.e(f"v_lshrrev_b32 {vr(vG)}, 4, {vr(vLane)}")
        A.e(f"v_bfe_u32 {vr(vR)}, {vr(vLane)}, 2, 2"); A.e(f"v_and_b32 {vr(vC)}, 3, {vr(vLane)}")
    def p1_setup():
        A.e(f"s_lshr_b32 s{sTg}, s{sWave}, 1"); A.e(f"s_and_b32 s{sRh}, s{sWave}, 1")
        A.e(f"s_cmp_eq_u32 s{sIsQ}, 1"); A.e(f"s_cbranch_scc1 {name}_uq")
        A.e(f"s_mul_i32 s{sT0}, s{sTg}, 9"); A.e(f"s_add_u32 s{sT0}, s{sT0}, s{sDelta}")
        for t, u in enumerate([0, 5, 24, 29]): A.e(f"s_add_u32 s{sU+t}, s{sT0}, {u}")
        A.e(f"v_and_b32 {vr(vT[0])}, 1, {vr(vC)}"); A.e(f"v_mul_u32_u24 {vr(vT[0])}, 9, {vr(vT[0])}")
        A.e(f"v_lshrrev_b32 {vr(vT[1])}, 1, {vr(vC)}"); A.e(f"v_mul_u32_u24 {vr(vT[1])}, 24, {vr(vT[1])}")
        A.e(f"v_add3_u32 {vr(vT[5])}, {vr(vT[0])}, {vr(vT[1])}, 4")
        A.e(f"s_branch {name}_uc")
        A.label(f"{name}_uq")
        A.e(f"s_mul_i32 s{sT0}, s{sTg}, 18"); A.e(f"s_add_u32 s{sT0}, s{sT0}, s{sDelta}")
        for t, u in enumerate([0, 5, 9, 14]): A.e(f"s_add_u32 s{sU+t}, s{sT0}, {u}")
        A.e(f"v_mul_u32_u24 {vr(vT[5])}, 9, {vr(vC)}"); A.e(f"v_add_u32 {vr(vT[5])}, 4, {vr(vT[5])}")
        A.label(f"{name}_uc")
        A.e(f"v_add_u32 {vr(vT[5])}, s{sDelta}, {vr(vT[5])}")
        A.e(f"v_lshl_add_u32 {vr(vT[0])}, {vr(vG)}, 3, {vr(vR)}")
        A.e(f"v_mul_u32_u24 {vr(vT[0])}, 384, {vr(vT[0])}"); A.e(f"v_add_u32 {vr(vT[0])}, {WBASE}, {vr(vT[0])}")
        A.e(f"v_lshrrev_b32 {vr(vT[1])}, 1, {vr(vR)}"); A.e(f"v_lshlrev_b32 {vr(vT[1])}, 2, {vr(vT[1])}")
        A.e(f"v_and_b32 {vr(vT[2])}, 1, {vr(vG)}"); A.e(f"v_lshl_or_b32 {vr(vT[1])}, {vr(vT[2])}, 3, {vr(vT[1])}")
        for t in range(4):
            A.e(f"v_add_u32 {vr(vT[2])}, s{sU+t}, {vr(vC)}"); A.e(f"v_xor_b32 {vr(vT[2])}, {vr(vT[2])}, {vr(vT[1])}")
            A.e(f"v_lshl_add_u32 {vr(vRW+t)}, {vr(vT[2])}, 3, {vr(vT[0])}")
        A.e(f"v_xor_b32 {vr(vT[2])}, {vr(vT[5])}, {vr(vT[1])}"); A.e(f"v_lshl_add_u32 {vr(vRW+4)}, {vr(vT[2])}, 3, {vr(vT[0])}")
        A.e(f"s_lshl_b32 s{sT0}, s{sRh}, 6")
        A.e(f"v_add_u32 {vr(vT[0])}, s{sT0}, {vr(vL15)}"); A.e(f"v_lshlrev_b32 {vr(vT[0])}, 7, {vr(vT[0])}")
        A.e(f"v_and_b32 {vr(vT[1])}, 7, {vr(vLane)}"); A.e(f"v_xor_b32 {vr(vT[1])}, {vr(vT[1])}, {vr(vG)}")
        A.e(f"v_lshl_add_u32 {vr(vT[0])}, {vr(vT[1])}, 4, {vr(vT[0])}")
        A.e(f"s_lshl_b32 s{sT0}, s{sTg}, 12"); A.e(f"s_xor_b32 s{sT1}, s{sT0}, 4096")
        A.e(f"v_add_u32 {vr(vRX)}, s{sT0}, {vr(vT[0])}"); A.e(f"v_add_u32 {vr(vRX+1)}, s{sT1}, {vr(vT[0])}")
        A.e(f"v_xor_b32 {vr(vRX+2)}, 64, {vr(vRX)}"); A.e(f"v_xor_b32 {vr(vRX+3)}, 64, {vr(vRX+1)}")
    def p1_init_acc():
        A.e(f"s_mov_b32 s{sL2}, {LOG2E:#x}"); A.e(f"s_mov_b32 s{sL2+1}, {LOG2E:#x}"); A.e(f"s_mov_b32 s{sEp}, {EPS:#x}"); A.e(f"s_mov_b32 s{sEp+1}, {EPS:#x}")
        A.e(f"v_mov_b32 {vr(vNL)}, {NLOG2E:#x}"); A.e(f"v_mov_b32 {vr(vNL+1)}, {NLOG2E:#x}")
        for i in range(32): A.e(f"v_mov_b32 {vr(vAcc+i)}, 1.0")
        A.e(f"s_cmp_eq_u32 s{sIsQ}, 1"); A.e(f"s_cselect_b32 s{sT0}, 1.0, 0")
        for i in range(32, 64): A.e(f"v_mov_b32 {vr(vAcc+i)}, s{sT0}")
        A.e(f"s_cselect_b32 s{sT0}, 16, 8")
        A.e(f"v_cmp_gt_u32 s[{sM0}:{sM0+1}], s{sT0}, {vr(vL15)}")
        A.e(f"v_mov_b32 {vr(vT[0])}, 1.0"); A.e("s_nop 0")
        A.e(f"v_cndmask_b32 {vr(vAcc+64)}, 0, {vr(vT[0])}, s[{sM0}:{sM0+1}]")
        for i in range(65, 72): A.e(f"v_mov_b32 {vr(vAcc+i)}, {vr(vAcc+64)}")

    def p2_setup():
        A.e(f"s_cmp_ge_u32 s{sJ}, 16"); A.e(f"s_cselect_b32 s{sT0}, 8, 0"); A.e(f"s_sub_u32 s{sT0}, s{sJ}, s{sT0}")
        A.e(f"s_mul_i32 s{sT1}, s{sT0}, 43"); A.e(f"s_lshr_b32 s{sT1}, s{sT1}, 8")
        A.e(f"s_mul_i32 s{sT2}, s{sT1}, 6"); A.e(f"s_sub_u32 s{sNt}, s{sT0}, s{sT2}")
        A.e(f"s_lshl_b32 s{sMt2}, s{sXcd}, 2"); A.e(f"s_add_u32 s{sMt2}, s{sMt2}, s{sT1}")
        A.e(f"s_and_b32 s{sSp}, s{sWave}, 1"); A.e(f"s_lshr_b32 s{sKh}, s{sWave}, 1")
        t = vT
        A.e(f"s_mul_i32 s{sT2}, s{sNt}, 192")
        for i in range(3):
            if i: A.e(f"v_add_u32 {vr(t[0])}, {64*i}, {vr(vLane)}")
            Lr = t[0] if i else vLane
            A.e(f"v_mul_u32_u24 {vr(t[1])}, 5462, {vr(Lr)}"); A.e(f"v_lshrrev_b32 {vr(t[1])}, 16, {vr(t[1])}")
            A.e(f"v_mul_u32_u24 {vr(t[2])}, 12, {vr(t[1])}"); A.e(f"v_sub_u32 {vr(t[2])}, {vr(Lr)}, {vr(t[2])}")
            A.e(f"v_mul_u32_u24 {vr(t[3])}, 1152, {vr(t[1])}"); A.e(f"v_lshl_add_u32 {vr(vOad+i)}, {vr(t[2])}, 4, {vr(t[3])}")
            A.e(f"v_lshrrev_b32 {vr(t[4])}, 1, {vr(t[1])}"); A.e(f"v_and_b32 {vr(t[4])}, 2, {vr(t[4])}"); A.e(f"v_xor_b32 {vr(t[2])}, {vr(t[2])}, {vr(t[4])}")
            A.e(f"v_lshl_add_u32 {vr(t[3])}, {vr(t[2])}, 4, {vr(t[3])}")
            A.e(f"v_add_u32 {vr(vWA+i)}, s{sT2}, {vr(t[3])}")
            if i: A.e(f"v_subrev_u32 {vr(vWA+i)}, {1024*i}, {vr(vWA+i)}")
        A.e(f"s_lshl_b32 s{sT0}, s{sMt2}, 6"); A.e(f"s_lshl_b32 s{sT1}, s{sSp}, 5"); A.e(f"s_add_u32 s{sT0}, s{sT0}, s{sT1}"); A.e(f"s_lshl_b32 s{sT1}, s{sKh}, 4"); A.e(f"s_add_u32 s{sT0}, s{sT0}, s{sT1}")
        A.e(f"s_mul_i32 s{sT0}, s{sT0}, 1152"); A.e(f"s_add_u32 s{sT0}, s{sT0}, s{sT2}")
        for i in range(3): A.e(f"v_add_u32 {vr(vOad+i)}, s{sT0}, {vr(vOad+i)}")
        A.e(f"s_mul_i32 s{sT0}, s{sKh}, 288"); A.e(f"s_lshl_b32 s{sT1}, s{sSp}, 4"); A.e(f"s_add_u32 s{sT0}, s{sT0}, s{sT1}")
        A.e(f"s_mul_i32 s{sWm}, s{sT0}, 192"); A.e(f"s_mul_i32 s{sWs}, s{sT0}, 1152")
        A.e(f"s_lshl_b32 s{sT0}, s{sMt2}, 2"); A.e(f"s_lshl_b32 s{sT1}, s{sSp}, 1"); A.e(f"s_add_u32 s{sT0}, s{sT0}, s{sT1}"); A.e(f"s_mul_i32 s{sT0}, s{sT0}, {PQ_STILE}")
        A.e(f"s_lshl_b32 s{sT1}, s{sKh}, 13"); A.e(f"s_add_u32 s{sT1}, s{sT1}, s{sT0}")
        A.e(f"v_lshlrev_b32 {vr(vXad)}, 4, {vr(vLane)}"); A.e(f"v_add_u32 {vr(vXad)}, s{sT1}, {vr(vXad)}")
        A.e(f"s_lshl_b32 s{sT1}, s{sKh}, 10"); A.e(f"s_add_u32 s{sT1}, s{sT1}, s{sT0}"); A.e(f"s_add_u32 s{sT1}, s{sT1}, 16384")
        A.e(f"v_lshlrev_b32 {vr(vCad)}, 3, {vr(vLane)}"); A.e(f"v_add_u32 {vr(vCad)}, s{sT1}, {vr(vCad)}")
        A.e(f"v_lshlrev_b32 {vr(vKad)}, 4, v0"); A.e(f"v_add_u32 {vr(vKad)}, {KVS_OFF}, {vr(vKad)}")
        A.e(f"v_lshlrev_b32 {vr(vKL)}, 3, v0"); A.e(f"v_add_u32 {vr(vKL)}, {KVI}, {vr(vKL)}")
        A.e(f"s_mul_i32 s{sT0}, s{sKh}, 55296")
        A.e(f"v_lshl_add_u32 {vr(t[0])}, {vr(vG)}, 2, {vr(vR)}"); A.e(f"v_mul_u32_u24 {vr(t[0])}, 192, {vr(t[0])}")
        A.e(f"v_lshl_add_u32 {vr(t[0])}, {vr(vC)}, 3, {vr(t[0])}"); A.e(f"v_add_u32 {vr(t[0])}, s{sT0}, {vr(t[0])}")
        A.e(f"v_and_b32 {vr(t[1])}, 1, {vr(vG)}"); A.e(f"v_lshl_add_u32 {vr(vB)}, {vr(t[1])}, 5, {vr(t[0])}")
        A.e(f"v_xor_b32 {vr(t[1])}, 1, {vr(t[1])}"); A.e(f"v_lshl_add_u32 {vr(vB+1)}, {vr(t[1])}, 5, {vr(t[0])}")
        A.e(f"v_mul_u32_u24 {vr(t[0])}, 36, {vr(vR)}"); A.e(f"v_add3_u32 {vr(t[0])}, {vr(t[0])}, {vr(vG)}, 16"); A.e(f"v_mul_u32_u24 {vr(t[0])}, 192, {vr(t[0])}")
        A.e(f"v_lshl_add_u32 {vr(t[0])}, {vr(vC)}, 3, {vr(t[0])}"); A.e(f"v_add_u32 {vr(t[0])}, s{sT0}, {vr(t[0])}")
        A.e(f"v_and_b32 {vr(t[1])}, 1, {vr(vR)}"); A.e(f"v_lshl_add_u32 {vr(vE)}, {vr(t[1])}, 5, {vr(t[0])}")
        A.e(f"v_xor_b32 {vr(t[1])}, 1, {vr(t[1])}"); A.e(f"v_lshl_add_u32 {vr(vE+1)}, {vr(t[1])}, 5, {vr(t[0])}")
        A.e(f"s_mul_i32 s{sT0}, s{sKh}, 12800"); A.e(f"s_add_u32 s{sT0}, s{sT0}, {KVI}")
        q, gp, sa, sb = t[0], t[1], t[2], t[3]
        A.e(f"v_and_b32 {vr(q)}, 3, {vr(vL15)}"); A.e(f"v_lshrrev_b32 {vr(gp)}, 2, {vr(vL15)}")
        A.e(f"v_mov_b32 {vr(sa)}, 19"); A.e(f"v_mov_b32 {vr(sb)}, 19"); A.e(f"v_mov_b32 {vr(t[4])}, 18")
        A.e(f"v_cmp_eq_u32 vcc, 1, {vr(q)}"); A.e("s_nop 1"); A.e(f"v_cndmask_b32 {vr(sa)}, {vr(sa)}, {vr(t[4])}, vcc")
        A.e(f"v_cmp_eq_u32 vcc, 2, {vr(q)}"); A.e("s_nop 1"); A.e(f"v_cndmask_b32 {vr(sb)}, {vr(sb)}, {vr(t[4])}, vcc")
        A.e(f"v_add_u32 {vr(t[4])}, 16, {vr(gp)}")
        A.e(f"v_cmp_eq_u32 vcc, 0, {vr(vL15)}"); A.e("s_nop 1"); A.e(f"v_cndmask_b32 {vr(sa)}, {vr(sa)}, {vr(t[4])}, vcc")
        A.e(f"v_cmp_eq_u32 vcc, 4, {vr(vL15)}"); A.e("s_nop 1"); A.e(f"v_cndmask_b32 {vr(sa)}, {vr(sa)}, {vr(t[4])}, vcc")
        A.e(f"v_add_u32 {vr(t[4])}, 14, {vr(gp)}")
        A.e(f"v_cmp_eq_u32 vcc, 8, {vr(vL15)}"); A.e("s_nop 1"); A.e(f"v_cndmask_b32 {vr(sb)}, {vr(sb)}, {vr(t[4])}, vcc")
        A.e(f"v_cmp_eq_u32 vcc, 12, {vr(vL15)}"); A.e("s_nop 1"); A.e(f"v_cndmask_b32 {vr(sb)}, {vr(sb)}, {vr(t[4])}, vcc")
        A.e(f"v_mul_u32_u24 {vr(t[4])}, 40, {vr(vL15)}"); A.e(f"v_add_u32 {vr(t[4])}, s{sT0}, {vr(t[4])}")
        A.e(f"v_mul_u32_u24 {vr(sa)}, 40, {vr(sa)}"); A.e(f"v_add_u32 {vr(sa)}, s{sT0}, {vr(sa)}")
        A.e(f"v_mul_u32_u24 {vr(sb)}, 40, {vr(sb)}"); A.e(f"v_add_u32 {vr(sb)}, s{sT0}, {vr(sb)}")
        A.e(f"v_lshl_add_u32 {vr(vM0)}, {vr(vG)}, 3, {vr(t[4])}"); A.e(f"v_lshl_add_u32 {vr(vM1A)}, {vr(vG)}, 3, {vr(sa)}"); A.e(f"v_lshl_add_u32 {vr(vM1B)}, {vr(vG)}, 3, {vr(sb)}")
        A.e(f"s_add_u32 s{sT1}, s{sT0}, 760"); A.e(f"v_mov_b32 {vr(t[0])}, s{sT1}")
        for gam in range(4):
            A.e(f"v_cmp_eq_u32 vcc, {gam}, {vr(vG)}"); A.e("s_nop 1")
            A.e(f"v_cndmask_b32 {vr(vC0+gam)}, {vr(t[0])}, {vr(t[4])}, vcc")
            A.e(f"v_cndmask_b32 {vr(vC1A+gam)}, {vr(t[0])}, {vr(sa)}, vcc")
            A.e(f"v_cndmask_b32 {vr(vC1B+gam)}, {vr(t[0])}, {vr(sb)}, vcc")
        A.e(f"v_cmp_gt_u32 s[{sG2}:{sG2+1}], 2, {vr(vG)}")
    def wo_dma():
        g = []
        for t in range(9):
            g.append([f"s_mov_b32 m0, s{sWm}", f"s_add_u32 s{sWm}, s{sWm}, {32*192}"])
            g.append([f"buffer_load_dwordx4 {vr(vWA)}, s[{SWO}:{SWO+3}], s{sWs} offen lds"])
            g.append([f"buffer_load_dwordx4 {vr(vWA+1)}, s[{SWO}:{SWO+3}], s{sWs} offen offset:1024 lds"])
            g.append([f"buffer_load_dwordx4 {vr(vWA+2)}, s[{SWO}:{SWO+3}], s{sWs} offen offset:2048 lds", f"s_add_u32 s{sWs}, s{sWs}, {32*1152}"])
        return g

    dma_chunk(0)
    stamp(1) if "st_iss" in opts else None
    lane_decode(); p1_setup()
    A.e("s_barrier")
    dma_chunk(1)
    p1_init_acc(); srd_rest()
    dma_chunk(2)
    p2_setup()

    def read_list(f, kk, st):
        fx, fw = F[f]; xo = st*XST; wo = st*WST + kk*12288
        def xr(j): return f"ds_read_b128 {vr(fx+4*j,4)}, {vr(vRX + 2*kk + (j >> 1))} offset:{xo + (j & 1)*2048}"
        def wr(t, h): return f"ds_read_b64_tr_b16 {vr(fw+4*t+2*h,2)}, {vr(vRW+t)} offset:{wo + h*1536}"
        l = [xr(0), wr(0, 0), wr(0, 1), xr(1), xr(2), xr(3)]
        for t in range(1, 5): l += [wr(t, 0), wr(t, 1)]
        return l
    def need(m): return 3 + m if m < 4 else (6 + 2*(m // 4) if m < 16 else 14)
    def mfma_list(f, isq):
        fx, fw = F[f]; l = []
        for m in range(18):
            t, j = (m // 4, m % 4) if m < 16 else (4, m - 16)
            d = vr(acc(t, j), 4); x = vr(fx+4*j, 4); w = vr(fw+4*t, 4)
            l.append(f"v_mfma_f32_16x16x32_bf16 {d}, {w}, {x}, {d}" if isq else f"v_mfma_f32_16x16x32_bf16 {d}, {x}, {w}, {d}")
        return l
    def spread(items, n, lo=0, hi=None):
        hi = n if hi is None else hi
        s = [[] for _ in range(n)]
        for k, it in enumerate(items): s[lo + (k*(hi-lo))//len(items)].append(it)
        return s
    def stepA(isq, st, dma):
        ms = mfma_list(0, isq); rl = read_list(1, 1, st)
        rs = spread(rl, 18, 0, 12); ds = spread(dma, 18, 1, 17) if dma else [[] for _ in range(18)]
        issued = 0; lastn = 0
        for m in range(18):
            if need(m) > lastn:
                A.e(f"s_waitcnt lgkmcnt({min(15, 14 - need(m) + issued)})"); lastn = need(m)
            A.e(ms[m])
            for i in rs[m]: A.e(i); issued += 1
            for g in ds[m]:
                for i in g: A.e(i)
    def stepB(isq, st_next, wait, dma, last, lastfill=None):
        ms = mfma_list(1, isq)
        A.e("s_waitcnt lgkmcnt(0)")
        if last:
            A.e("s_barrier")
            interleave(A, ms, lastfill)
            return
        for m in range(NPRE): A.e(ms[m])
        A.e(wait); A.e("s_barrier")
        n = 18 - NPRE
        rs = spread(read_list(0, 0, st_next), n, 0, n - 4)
        ds = spread(dma, n, 1, n) if dma else [[] for _ in range(n)]
        for k in range(n):
            A.e(ms[NPRE+k])
            for i in rs[k]: A.e(i)
            for g in ds[k]:
                for i in g: A.e(i)
    def mainloop(tag, isq, lastfill):
        A.e("s_waitcnt vmcnt(20)"); A.e("s_barrier")
        stamp(1)
        for i in read_list(0, 0, 0): A.e(i)
        A.e(f"s_mov_b32 s{sIt}, 0")
        stepA(isq, 0, None)
        A.label(f"{tag}_loop")
        for st in range(3):
            stepB(isq, (st+1) % 3, "s_waitcnt vmcnt(10)", dma_x(st), False)
            stepA(isq, (st+1) % 3, dma_w(st))
        A.e(f"s_add_u32 s{sIt}, s{sIt}, 1"); A.e(f"s_cmp_lt_u32 s{sIt}, 2"); A.e(f"s_cbranch_scc1 {tag}_loop")
        stepB(isq, 1, "s_waitcnt vmcnt(10)", None, False)
        stepA(isq, 1, None)
        stepB(isq, 2, "s_waitcnt vmcnt(0)", None, False)
        stepA(isq, 2, None)
        stepB(isq, None, None, None, True, lastfill)
    def phi2(a, t):
        return [f"v_pk_fma_f32 {vr(t,2)}, {vr(a,2)}, s[{sL2}:{sL2+1}], {vr(vNL,2)}",
                f"v_exp_f32_e64 {vr(t)}, {vr(t)} clamp", f"v_exp_f32_e64 {vr(t+1)}, {vr(t+1)} clamp",
                f"v_max_f32 {vr(a)}, {vr(a)}, {vr(t)}", f"v_max_f32 {vr(a+1)}, {vr(a+1)}, {vr(t+1)}",
                f"v_pk_add_f32 {vr(a,2)}, {vr(a,2)}, s[{sEp}:{sEp+1}]"]
    def phi4(a):
        x = phi2(a, vT[0]); y = phi2(a+2, vT[2])
        return [x[0], y[0], x[1], y[1], x[2], y[2], x[3], x[4], y[3], y[4], x[5], y[5]]

    wod = wo_dma()
    A.e(f"s_cmp_eq_u32 s{sIsQ}, 1"); A.e(f"s_cbranch_scc1 {name}_q")
    exfill = [
        [f"s_lshl_b32 s{sT0}, s{sG}, 2", f"v_mov_b32 {vr(vFlagA)}, s{sT0}"],
        [f"global_load_dword {vr(vFlag)}, {vr(vFlagA)}, s[{PDBG}:{PDBG+1}] sc1"],
        [f"s_lshl_b32 s{sT0}, s{sTg}, 13", f"s_lshl_b32 s{sT1}, s{sRh}, 1", f"s_add_u32 s{sT2}, s{sT1}, s{sTg}", f"s_lshl_b32 s{sT2}, s{sT2}, 10"],
        [f"s_xor_b32 s{sNb}, s{sT2}, 1024", f"v_lshlrev_b32 {vr(vT[5])}, 4, {vr(vLane)}", f"v_add_u32 {vr(vT[5])}, {EX}, {vr(vT[5])}"],
        [f"s_add_u32 s{sX}, s{sT0}, s{sT2}", f"v_add_u32 {vr(vRX)}, s{sX}, {vr(vT[5])}"],
        [f"s_add_u32 s{sX}, s{sT0}, s{sNb}", f"v_add_u32 {vr(vRX+1)}, s{sX}, {vr(vT[5])}"],
        [f"v_add_u32 {vr(vRX+2)}, s{sT2}, {vr(vT[5])}"],
        [f"v_mov_b32 {vr(vP+36)}, 0", f"v_mov_b32 {vr(vP+37)}, 0", f"v_mov_b32 {vr(vP+38)}, 0", f"v_mov_b32 {vr(vP+39)}, 0", f"v_lshlrev_b32 {vr(vT[4])}, 4, v0", f"v_add_u32 {vr(vT[4])}, {STG}, {vr(vT[4])}"],
        [f"ds_write_b128 {vr(vT[4])}, {vr(vP+36,4)}"],
        [f"v_cmp_gt_u32 vcc, {400-256}, v0", f"s_and_saveexec_b64 s[{sExec}:{sExec+1}], vcc", f"ds_write_b128 {vr(vT[4])}, {vr(vP+36,4)} offset:4096", f"s_mov_b64 exec, s[{sExec}:{sExec+1}]"],
    ]
    mainloop(f"{name}_kv", False, exfill + wod[:8])
    stamp(2)
    ep = []
    exb = [0, 1, 4, 5]
    order = [2, 3, 0, 1]
    for t in order:
        for hp in range(2):
            if t < 2: ep += phi4(acc(t, 2*hp)) + phi4(acc(t, 2*hp+1))
            p = vP + 4*((t*2+hp) % 8); a0 = acc(t, 2*hp)
            for h in range(4): ep.append(f"v_cvt_pk_bf16_f32 {vr(p+h)}, {vr(a0+2*h)}, {vr(a0+2*h+1)}")
            ep.append(f"ds_write_b128 {vr(vRX+hp)}, {vr(p,4)} offset:{exb[t]*4096}")
    a8 = acc(4, 0)
    ep.append(f"v_cmp_gt_u32 s[{sM0}:{sM0+1}], 8, {vr(vL15)}")
    for h in range(4): ep.append(f"v_pk_fma_f32 {vr(vP+32+2*h,2)}, {vr(a8+2*h,2)}, s[{sL2}:{sL2+1}], {vr(vNL,2)}")
    for i in range(8): ep.append(f"v_exp_f32_e64 {vr(vP+32+i)}, {vr(vP+32+i)} clamp")
    for i in range(8): ep.append(f"v_max_f32 {vr(vP+32+i)}, {vr(a8+i)}, {vr(vP+32+i)}")
    for h in range(4): ep.append(f"v_pk_add_f32 {vr(vP+32+2*h,2)}, {vr(vP+32+2*h,2)}, s[{sEp}:{sEp+1}]")
    for i in range(8): ep.append(f"v_cndmask_b32 {vr(a8+i)}, {vr(a8+i)}, {vr(vP+32+i)}, s[{sM0}:{sM0+1}]")
    for h in range(4): ep.append(f"v_cvt_pk_bf16_f32 {vr(vP+32+h)}, {vr(a8+2*h)}, {vr(a8+2*h+1)}")
    ep.append(f"ds_write_b128 {vr(vRX+2)}, {vr(vP+32,4)} offset:{8*4096}")
    for i in range(4): ep.append(f"v_mov_b32 {vr(vOnes+i)}, 0x3f803f80")
    A.nop(6)
    interleave(A, ep, wod[8:30], start=4)
    A.e("s_waitcnt lgkmcnt(0)"); A.e("s_barrier")
    fa = F[0][0]; TA = fa; TB = fa + 16; T8 = fa + 32
    A.e(f"s_lshl_b32 s{sT0}, s{sWave}, 12"); A.e(f"v_add_u32 {vr(vT[4])}, s{sT0}, {vr(vT[5])}")
    for rb in range(4):
        A.e(f"ds_read_b128 {vr(TA+4*rb,4)}, {vr(vT[4])} offset:{rb*1024}")
        A.e(f"ds_read_b128 {vr(TB+4*rb,4)}, {vr(vT[4])} offset:{4*4096 + rb*1024}")
        A.e(f"ds_read_b128 {vr(T8+4*rb,4)}, {vr(vT[5])} offset:{8*4096 + rb*1024}")
    ac = [vAcc + 4*i for i in range(6)]
    addr = [
        [f"s_mul_i32 s{sT1}, s{sWave}, {KVS_HEAD}", f"s_add_u32 s{sT1}, s{sT1}, {STG}", f"s_and_b32 s{sX}, s{sWave}, 1"],
        [f"s_lshr_b32 s{sT2}, s{sWave}, 1", f"s_lshl_b32 s{sT0}, s{sT2}, 2", f"s_lshl_b32 s{sNb}, s{sX}, 1", f"s_add_u32 s{sT0}, s{sT0}, s{sNb}", f"s_add_u32 s{sT0}, s{sT0}, 8"],
        [f"v_subrev_u32 {vr(vT[3])}, s{sT0}, {vr(vL15)}", f"v_cmp_gt_u32 s[{sM0}:{sM0+1}], 2, {vr(vT[3])}", f"v_cmp_eq_u32 s[{sM1}:{sM1+1}], 0, {vr(vL15)}"],
        [f"s_lshl_b32 s{sNb}, s{sX}, 4", f"s_add_u32 s{sNb}, s{sNb}, s{sT1}", f"v_lshlrev_b32 {vr(vT[4])}, 4, {vr(vG)}", f"v_add_u32 {vr(vT[4])}, s{sNb}, {vr(vT[4])}"],
        [f"v_mul_u32_u24 {vr(vT[0])}, 80, {vr(vL15)}", f"v_mul_u32_u24 {vr(vT[1])}, 80, {vr(vT[3])}"],
        [f"v_add_u32 {vr(vRW)}, {vr(vT[0])}, {vr(vT[4])}", f"v_add_u32 {vr(vRW+1)}, {vr(vT[1])}, {vr(vT[4])}"],
        [f"s_cmp_eq_u32 s{sX}, 0", f"s_cselect_b32 s{sNb}, 64, 8", f"s_add_u32 s{sNb}, s{sNb}, s{sT1}"],
        [f"v_add_u32 {vr(vRW+2)}, s{sNb}, {vr(vT[0])}", f"v_add_u32 {vr(vRW+3)}, s{sNb}, {vr(vT[1])}", f"v_mov_b32 {vr(vRW+4)}, s{sNb}"],
        [f"v_cmp_eq_u32 vcc, s{sT2}, {vr(vG)}"],
        [f"s_mul_i32 s{sT0}, s{sG}, {4*KVS_HEAD}", f"s_add_u32 s{sT0}, s{sT0}, {KVS_OFF}", f"v_lshlrev_b32 {vr(vRX)}, 2, v0"],
        [f"v_add_u32 {vr(vRX+1)}, s{sT0}, {vr(vRX)}", f"v_add_u32 {vr(vRX+2)}, 4096, {vr(vRX+1)}", f"v_add_u32 {vr(vRX)}, {STG}, {vr(vRX)}"],
    ]
    mm = []
    for rb in range(4):
        ops = [(TA, TB), (TA, T8), (TA, None), (T8, TB), (T8, T8), (T8, None)]
        for i, (a, b) in enumerate(ops):
            bb = vr(vOnes, 4) if b is None else vr(b+4*rb, 4)
            c = "0" if rb == 0 else vr(ac[i], 4)
            mm.append((rb, f"v_mfma_f32_16x16x32_bf16 {vr(ac[i],4)}, {vr(a+4*rb,4)}, {bb}, {c}"))
    fl = addr + wod[30:]
    for g in addr[:3]:
        for i in g: A.e(i)
    fl = addr[3:] + wod[30:]
    k = 0
    for idx, (rb, m) in enumerate(mm):
        if idx % 6 == 0: A.e(f"s_waitcnt lgkmcnt({9 - 3*rb})")
        A.e(m)
        if k < len(fl):
            for i in fl[k]: A.e(i)
            k += 1
    while k < len(fl):
        for i in fl[k]: A.e(i)
        k += 1
    A.nop(8)
    A.e(f"ds_write_b128 {vr(vRW)}, {vr(ac[0],4)}")
    A.e(f"s_mov_b64 s[{sExec}:{sExec+1}], exec")
    A.e(f"s_mov_b64 exec, s[{sM0}:{sM0+1}]"); A.e(f"ds_write_b128 {vr(vRW+1)}, {vr(ac[1],4)} offset:{16*80}")
    A.e(f"s_mov_b64 exec, s[{sM1}:{sM1+1}]"); A.e(f"ds_write_b128 {vr(vT[4])}, {vr(ac[2],4)} offset:{18*80}")
    A.e(f"s_mov_b64 exec, s[{sExec}:{sExec+1}]")
    A.e(f"s_cmp_eq_u32 s{sX}, 0"); A.e(f"s_cbranch_scc1 {name}_xe")
    for a in ac[3:]:
        A.e(f"v_mov_b32 {vr(a)}, {vr(a+2)}"); A.e(f"v_mov_b32 {vr(a+1)}, {vr(a+3)}")
    A.label(f"{name}_xe")
    A.e(f"s_and_b64 s[{sM0}:{sM0+1}], s[{sM0}:{sM0+1}], vcc"); A.e(f"s_and_b64 s[{sM1}:{sM1+1}], s[{sM1}:{sM1+1}], vcc")
    A.e(f"s_mov_b64 exec, vcc"); A.e(f"ds_write_b64 {vr(vRW+2)}, {vr(ac[3],2)}")
    A.e(f"s_mov_b64 exec, s[{sM0}:{sM0+1}]"); A.e(f"ds_write_b64 {vr(vRW+3)}, {vr(ac[4],2)} offset:{16*80}")
    A.e(f"s_mov_b64 exec, s[{sM1}:{sM1+1}]"); A.e(f"ds_write_b64 {vr(vRW+4)}, {vr(ac[5],2)} offset:{18*80}")
    A.e(f"s_mov_b64 exec, s[{sExec}:{sExec+1}]")
    A.e("s_waitcnt lgkmcnt(0)"); A.e("s_barrier")
    for i in range(7): A.e(f"ds_read_b32 {vr(vP+i)}, {vr(vRX)} offset:{1024*i}")
    A.e(f"s_mov_b32 s{sIt}, 0")
    A.label(f"{name}_poll")
    A.e("s_waitcnt vmcnt(0)")
    A.e(f"v_readfirstlane_b32 s{sT0}, {vr(vFlag)}"); A.e("s_nop 3")
    A.e(f"s_cmp_lg_u32 s{sT0}, 0"); A.e(f"s_cbranch_scc1 {name}_go")
    A.e(f"s_add_u32 s{sIt}, s{sIt}, 1"); A.e(f"s_cmp_gt_u32 s{sIt}, {POLL_MAX}"); A.e(f"s_cbranch_scc1 {name}_go")
    A.e(f"global_load_dword {vr(vFlag)}, {vr(vFlagA)}, s[{PDBG}:{PDBG+1}] sc1"); A.e(f"s_branch {name}_poll")
    A.label(f"{name}_go")
    A.e("s_waitcnt lgkmcnt(0)")
    for i in range(4): A.e(f"global_atomic_add_f32 {vr(vRX+1)}, {vr(vP+i)}, s[{PWS}:{PWS+1}] offset:{1024*i}")
    for i in range(2): A.e(f"global_atomic_add_f32 {vr(vRX+2)}, {vr(vP+4+i)}, s[{PWS}:{PWS+1}] offset:{1024*i}")
    A.e(f"s_cmp_eq_u32 s{sWave}, 0"); A.e(f"s_cbranch_scc0 {name}_a7")
    A.e(f"global_atomic_add_f32 {vr(vRX+2)}, {vr(vP+6)}, s[{PWS}:{PWS+1}] offset:2048")
    A.label(f"{name}_a7")
    A.e(f"s_lshl_b32 s{sT0}, s{sG}, 7"); A.e(f"s_add_u32 s{sT0}, s{sT0}, {CNT_OFF}")
    A.e(f"s_branch {name}_signal")
    A.label(f"{name}_q")
    qfill = [
        [f"s_lshr_b32 s{sT0}, s{sMt}, 1", f"s_lshl_b32 s{sT0}, s{sT0}, 2", f"v_mov_b32 {vr(vFlagA)}, s{sT0}"],
        [f"global_load_dword {vr(vFlag)}, {vr(vFlagA)}, s[{PDBG}:{PDBG+1}] sc1"],
        [f"s_lshl_b32 s{sT0}, s{sMt}, 3", f"s_lshl_b32 s{sT1}, s{sRh}, 2", f"s_add_u32 s{sT0}, s{sT0}, s{sT1}", f"s_lshl_b32 s{sT1}, s{sTg}, 1"],
        [f"s_add_u32 s{sT2}, s{sT0}, s{sT1}", f"s_mul_i32 s{sT2}, s{sT2}, {PQ_STILE}", f"s_xor_b32 s{sT1}, s{sT1}, 2", f"s_add_u32 s{sT1}, s{sT0}, s{sT1}", f"s_mul_i32 s{sT1}, s{sT1}, {PQ_STILE}"],
        [f"s_lshl_b32 s{sT0}, s{sG}, 2", f"s_lshl_b32 s{sX}, s{sTg}, 1", f"s_add_u32 s{sT0}, s{sT0}, s{sX}", f"s_lshl_b32 s{sT0}, s{sT0}, 10"],
        [f"v_lshlrev_b32 {vr(vT[4])}, 4, {vr(vLane)}", f"v_add_u32 {vr(vT[4])}, s{sT0}, {vr(vT[4])}", f"v_add_u32 {vr(vRX)}, s{sT2}, {vr(vT[4])}", f"v_add_u32 {vr(vRX+1)}, s{sT1}, {vr(vT[4])}"],
        [f"s_lshl_b32 s{sT0}, s{sG}, 9", f"s_add_u32 s{sT0}, s{sT0}, s{sT2}", f"s_add_u32 s{sT0}, s{sT0}, 16384", f"v_lshlrev_b32 {vr(vRX+2)}, 3, {vr(vLane)}", f"v_add_u32 {vr(vRX+2)}, s{sT0}, {vr(vRX+2)}", f"s_mov_b32 s{sNb}, {PQ_STILE}"],
    ]
    mainloop(f"{name}_qq", True, qfill + wod[:8])
    stamp(2)
    ep = []; k = 0
    for j in range(4):
        for i in range(2):
            p = vP + 4*(k % 8); k += 1
            for tt in range(2):
                a0 = acc(2*i + tt, j)
                ep += phi4(a0)
                for h in range(2): ep.append(f"v_cvt_pk_bf16_f32 {vr(p+2*tt+h)}, {vr(a0+2*h)}, {vr(a0+2*h+1)}")
            so = "0" if (j & 1) == 0 else f"s{sNb}"
            ep.append(f"buffer_store_dwordx4 {vr(p,4)}, {vr(vRX+(j>>1))}, s[{SWS}:{SWS+3}], {so} offen offset:{i*1024} sc1")
    for j in range(2):
        p = vP + 32 + 2*j; a0 = acc(4, j)
        ep += phi4(a0)
        for h in range(2): ep.append(f"v_cvt_pk_bf16_f32 {vr(p+h)}, {vr(a0+2*h)}, {vr(a0+2*h+1)}")
        so = "0" if j == 0 else f"s{sNb}"
        ep.append(f"buffer_store_dwordx2 {vr(p,2)}, {vr(vRX+2)}, s[{SWS}:{SWS+3}], {so} offen sc1")
    A.nop(6)
    interleave(A, ep, wod[8:], start=2)
    A.e(f"s_mov_b32 s{sIt}, 0")
    A.label(f"{name}_qpoll")
    A.e("s_waitcnt vmcnt(0)")
    A.e(f"v_readfirstlane_b32 s{sT0}, {vr(vFlag)}"); A.e("s_nop 3")
    A.e(f"s_cmp_lg_u32 s{sT0}, 0"); A.e(f"s_cbranch_scc1 {name}_qgo")
    A.e(f"s_add_u32 s{sIt}, s{sIt}, 1"); A.e(f"s_cmp_gt_u32 s{sIt}, {POLL_MAX}"); A.e(f"s_cbranch_scc1 {name}_qgo")
    A.e(f"global_load_dword {vr(vFlag)}, {vr(vFlagA)}, s[{PDBG}:{PDBG+1}] sc1"); A.e(f"s_branch {name}_qpoll")
    A.label(f"{name}_qgo")
    A.e(f"s_lshl_b32 s{sT0}, s{sMt}, 7"); A.e(f"s_add_u32 s{sT0}, s{sT0}, {CNT_OFF + 8*128}")
    A.label(f"{name}_signal")
    A.e("s_waitcnt vmcnt(0)"); A.e("s_barrier")
    A.e(f"s_cmp_eq_u32 s{sWave}, 0"); A.e(f"s_cbranch_scc0 {name}_sig2")
    A.e(f"v_mov_b32 {vr(vT[0])}, s{sT0}"); A.e(f"v_mov_b32 {vr(vT[1])}, 1")
    A.e(f"v_cmp_eq_u32 vcc, 0, {vr(vLane)}"); A.e(f"s_and_saveexec_b64 s[{sExec}:{sExec+1}], vcc")
    A.e(f"global_atomic_add {vr(vT[0])}, {vr(vT[1])}, s[{PWS}:{PWS+1}] sc1")
    A.e(f"s_mov_b64 exec, s[{sExec}:{sExec+1}]")
    A.label(f"{name}_sig2")
    stamp(3)
    A.e(f"s_cmp_ge_u32 s{sJ}, 16"); A.e(f"s_cselect_b32 s{sT0}, 1, 0"); A.e(f"s_cmp_lt_u32 s{sJ}, 24"); A.e(f"s_cselect_b32 s{sT1}, 1, 0"); A.e(f"s_and_b32 s{sT0}, s{sT0}, s{sT1}")
    A.e(f"s_cmp_eq_u32 s{sT0}, 1"); A.e(f"s_cbranch_scc1 {name}_fin")
    A.e(f"s_branch {name}_p2")
    A.label(f"{name}_helper")
    srd_consts()
    A.e("s_waitcnt lgkmcnt(0)")
    srd_bases(); srd_rest()
    A.e(f"s_cmp_ge_u32 s2, 8"); A.e(f"s_cbranch_scc1 {name}_hz")
    A.e(f"s_mul_i32 s{sT0}, s2, {4*KVS_HEAD}"); A.e(f"s_add_u32 s{sT0}, s{sT0}, {KVS_OFF}")
    A.e(f"v_lshlrev_b32 {vr(vT[0])}, 4, v0"); A.e(f"v_add_u32 {vr(vT[0])}, s{sT0}, {vr(vT[0])}")
    for i in range(4): A.e(f"v_mov_b32 {vr(vP+i)}, 0")
    A.e(f"global_store_dwordx4 {vr(vT[0])}, {vr(vP,4)}, s[{PWS}:{PWS+1}] sc1")
    A.e(f"v_add_u32 {vr(vT[0])}, 4096, {vr(vT[0])}")
    A.e(f"v_cmp_gt_u32 vcc, {400-256}, v0"); A.e(f"s_and_saveexec_b64 s[{sExec}:{sExec+1}], vcc"); A.e(f"s_cbranch_execz {name}_zs")
    A.e(f"global_store_dwordx4 {vr(vT[0])}, {vr(vP,4)}, s[{PWS}:{PWS+1}] sc1")
    A.label(f"{name}_zs")
    A.e(f"s_mov_b64 exec, s[{sExec}:{sExec+1}]")
    A.e(f"s_cmp_eq_u32 s{sWave}, 0"); A.e(f"s_cbranch_scc0 {name}_zc")
    A.e(f"s_lshl_b32 s{sT0}, s2, 7"); A.e(f"s_lshl_b32 s{sT1}, s2, 8"); A.e(f"s_add_u32 s{sT1}, s{sT1}, {8*128}")
    A.e(f"v_lshlrev_b32 {vr(vT[0])}, 7, {vr(vLane)}"); A.e(f"v_add_u32 {vr(vT[0])}, s{sT1}, {vr(vT[0])}"); A.e(f"v_subrev_u32 {vr(vT[0])}, 128, {vr(vT[0])}")
    A.e(f"v_mov_b32 {vr(vT[1])}, s{sT0}"); A.e(f"v_cmp_eq_u32 vcc, 0, {vr(vLane)}"); A.e("s_nop 1"); A.e(f"v_cndmask_b32 {vr(vT[0])}, {vr(vT[0])}, {vr(vT[1])}, vcc")
    A.e(f"v_add_u32 {vr(vT[0])}, {CNT_OFF}, {vr(vT[0])}")
    A.e(f"v_cmp_gt_u32 vcc, 3, {vr(vLane)}"); A.e(f"s_and_saveexec_b64 s[{sExec}:{sExec+1}], vcc")
    A.e(f"global_store_dword {vr(vT[0])}, {vr(vP)}, s[{PWS}:{PWS+1}] sc1")
    A.e(f"s_mov_b64 exec, s[{sExec}:{sExec+1}]")
    A.label(f"{name}_zc")
    A.e("s_waitcnt vmcnt(0)"); A.e("s_barrier")
    A.e(f"s_cmp_eq_u32 s{sWave}, 0"); A.e(f"s_cbranch_scc0 {name}_hz")
    A.e(f"s_lshl_b32 s{sT0}, s2, 2"); A.e(f"v_mov_b32 {vr(vT[0])}, s{sT0}"); A.e(f"v_mov_b32 {vr(vT[1])}, 1")
    A.e(f"v_cmp_eq_u32 vcc, 0, {vr(vLane)}"); A.e(f"s_and_saveexec_b64 s[{sExec}:{sExec+1}], vcc")
    A.e(f"global_store_dword {vr(vT[0])}, {vr(vT[1])}, s[{PDBG}:{PDBG+1}] sc1")
    A.e(f"s_mov_b64 exec, s[{sExec}:{sExec+1}]")
    A.label(f"{name}_hz")
    if "nopf" not in opts:
        c0 = int(os.environ.get("PFC0", "1"))
        A.e(f"s_and_b32 s{sT0}, s{sXcd}, 3"); A.e(f"s_lshr_b32 s{sT1}, s{sXcd}, 2")
        A.e(f"s_cmp_eq_u32 s{sWave}, 3"); A.e(f"s_cbranch_scc1 {name}_hp_done")
        A.e(f"s_cmp_eq_u32 s{sWave}, 0"); A.e(f"s_cbranch_scc0 {name}_hp_w")
        A.e(f"s_lshl_b32 s{sT0}, s{sT0}, 9"); A.e(f"s_lshl_b32 s{sT2}, s{sJ}, 6"); A.e(f"s_add_u32 s{sT0}, s{sT0}, s{sT2}")
        A.e(f"v_add_u32 {vr(vT[0])}, s{sT0}, {vr(vLane)}"); A.e(f"v_mul_u32_u24 {vr(vT[0])}, 1152, {vr(vT[0])}")
        for c in range(c0, 9): A.e(f"buffer_load_dword {vr(vAcc+c)}, {vr(vT[0])}, s[{SX}:{SX+3}], 0 offen offset:{128*c}")
        A.e(f"s_branch {name}_hp_done")
        A.label(f"{name}_hp_w")
        A.e(f"s_sub_u32 s{sT2}, s{sWave}, 1"); A.e(f"s_lshl_b32 s{sT2}, s{sT2}, 3")
        A.e(f"v_and_b32 {vr(vT[1])}, 7, {vr(vLane)}"); A.e(f"v_add_u32 {vr(vT[1])}, s{sT2}, {vr(vT[1])}")
        A.e(f"s_lshl_b32 s{sT2}, s{sT1}, 2")
        A.e(f"v_add_u32 {vr(vT[2])}, 9, {vr(vT[1])}"); A.e(f"v_add_u32 {vr(vT[3])}, 13, {vr(vT[1])}"); A.e(f"v_subrev_u32 {vr(vT[4])}, 10, {vr(vT[1])}")
        A.e(f"v_cmp_gt_u32 vcc, 10, {vr(vT[1])}"); A.e("s_nop 1"); A.e(f"v_cndmask_b32 {vr(vT[4])}, {vr(vT[4])}, {vr(vT[3])}, vcc")
        A.e(f"v_cmp_gt_u32 vcc, 5, {vr(vT[1])}"); A.e("s_nop 1"); A.e(f"v_cndmask_b32 {vr(vT[4])}, {vr(vT[4])}, {vr(vT[2])}, vcc")
        A.e(f"v_add_u32 {vr(vT[4])}, s{sT2}, {vr(vT[4])}"); A.e(f"v_lshlrev_b32 {vr(vT[4])}, 7, {vr(vT[4])}")
        A.e(f"s_lshl_b32 s{sT2}, s{sJ}, 3")
        A.e(f"v_lshrrev_b32 {vr(vT[0])}, 3, {vr(vLane)}"); A.e(f"v_add_u32 {vr(vT[0])}, s{sT2}, {vr(vT[0])}"); A.e(f"v_mul_u32_u24 {vr(vT[0])}, 3456, {vr(vT[0])}")
        A.e(f"v_add_u32 {vr(vT[0])}, {vr(vT[0])}, {vr(vT[4])}")
        for c in range(c0, 9):
            A.e(f"s_mov_b32 s{sT2}, {c*221184}")
            A.e(f"buffer_load_dword {vr(vAcc+c)}, {vr(vT[0])}, s[{SW}:{SW+3}], s{sT2} offen")
        A.label(f"{name}_hp_done")
    lane_decode(); p2_setup()
    A.e("s_waitcnt vmcnt(0)")
    for g in wod:
        for i in g: A.e(i)
    stamp(3)
    A.label(f"{name}_p2")
    for i in range(48): A.e(f"v_mov_b32 {vr(vA2+i)}, 0")
    A.e(f"v_mov_b32 {vr(vEpsC)}, 0"); A.e(f"v_mov_b32 {vr(vEpsC+1)}, {EPS:#x}"); A.e(f"v_mov_b32 {vr(vEpsC+2)}, {EPS:#x}"); A.e(f"v_mov_b32 {vr(vEpsC+3)}, 0")
    def poll(tag, addr_fn, lanes, val):
        A.e(f"s_cmp_eq_u32 s{sWave}, 0"); A.e(f"s_cbranch_scc0 {name}_{tag}_d")
        addr_fn()
        A.e(f"v_cmp_gt_u32 vcc, {lanes}, {vr(vLane)}"); A.e(f"s_and_saveexec_b64 s[{sExec}:{sExec+1}], vcc")
        A.e(f"s_mov_b32 s{sIt}, 0")
        A.label(f"{name}_{tag}_l")
        A.e(f"global_load_dword {vr(vT[1])}, {vr(vT[0])}, {addr_fn.base} sc1")
        A.e("s_waitcnt vmcnt(0)")
        A.e(f"v_cmp_ne_u32 vcc, {val}, {vr(vT[1])}"); A.e("s_nop 4")
        A.e("s_cmp_eq_u64 vcc, 0"); A.e(f"s_cbranch_scc1 {name}_{tag}_ok")
        A.e(f"s_add_u32 s{sIt}, s{sIt}, 1"); A.e(f"s_cmp_gt_u32 s{sIt}, {POLL_MAX}"); A.e(f"s_cbranch_scc1 {name}_{tag}_ok")
        A.e("s_sleep 2"); A.e(f"s_branch {name}_{tag}_l")
        A.label(f"{name}_{tag}_ok")
        A.e(f"s_mov_b64 exec, s[{sExec}:{sExec+1}]")
        A.label(f"{name}_{tag}_d")
        A.e("s_barrier")
    def a_flags(): A.e(f"v_lshlrev_b32 {vr(vT[0])}, 2, {vr(vLane)}")
    a_flags.base = f"s[{PDBG}:{PDBG+1}]"
    def a_pq():
        A.e(f"s_lshr_b32 s{sT0}, s{sMt2}, 1"); A.e(f"s_lshl_b32 s{sT0}, s{sT0}, 7"); A.e(f"s_add_u32 s{sT0}, s{sT0}, {CNT_OFF + 8*128}"); A.e(f"v_mov_b32 {vr(vT[0])}, s{sT0}")
    a_pq.base = f"s[{PWS}:{PWS+1}]"
    def a_kv():
        A.e(f"v_lshlrev_b32 {vr(vT[0])}, 7, {vr(vLane)}"); A.e(f"v_add_u32 {vr(vT[0])}, {CNT_OFF}, {vr(vT[0])}")
    a_kv.base = f"s[{PWS}:{PWS+1}]"
    poll("pf", a_flags, 8, 1)
    poll("pp", a_pq, 1, 4)
    stamp(4)
    for sg in range(2):
        for jj in range(2):
            A.e(f"s_mov_b32 s{sT0}, {sg*PQ_STILE}")
            A.e(f"buffer_load_dwordx2 {ar(aCb+(sg*2+jj)*2,2)}, {vr(vCad)}, s[{SWS}:{SWS+3}], s{sT0} offen offset:{jj*512} sc1")
    for p in range(8):
        for sg in range(2):
            A.e(f"s_mov_b32 s{sT0}, {sg*PQ_STILE + p*1024}")
            A.e(f"buffer_load_dwordx4 {ar(X(sg,p)+2,4)}, {vr(vXad)}, s[{SWS}:{SWS+3}], s{sT0} offen sc1")
    A.e("s_waitcnt vmcnt(16)")
    for sg in range(2):
        for p in range(8):
            src = aCb + (sg*2 + (p >> 2))*2
            for h in range(2):
                A.e(f"v_accvgpr_mov_b32 {ar(X(sg,p)+h)}, {ar(src+h)}"); A.e(f"v_accvgpr_mov_b32 {ar(X(sg,p)+6+h)}, {ar(src+h)}")
    A.e("s_waitcnt vmcnt(0)")
    poll("pk", a_kv, 8, 16)
    stamp(5)
    for i in range(12):
        A.e(f"s_mov_b32 s{sT0}, {4096*i}")
        A.e(f"buffer_load_dwordx4 {vr(vO+4*i,4)}, {vr(vKad)}, s[{SWS}:{SWS+3}], s{sT0} offen sc1")
    A.e(f"s_cmp_lt_u32 s{sWave}, 2"); A.e(f"s_cbranch_scc0 {name}_k13")
    A.e(f"s_mov_b32 s{sT0}, {4096*12}")
    A.e(f"buffer_load_dwordx4 {vr(vO+48,4)}, {vr(vKad)}, s[{SWS}:{SWS+3}], s{sT0} offen sc1")
    A.e("s_waitcnt vmcnt(0)")
    A.e(f"v_cvt_pk_bf16_f32 {vr(vO+48)}, {vr(vO+48)}, {vr(vO+49)}"); A.e(f"v_cvt_pk_bf16_f32 {vr(vO+49)}, {vr(vO+50)}, {vr(vO+51)}")
    A.e(f"ds_write_b64 {vr(vKL)}, {vr(vO+48,2)} offset:{2048*12}")
    A.label(f"{name}_k13")
    for i in range(12):
        A.e(f"s_waitcnt vmcnt({11-i})")
        s = vO + 4*i
        A.e(f"v_cvt_pk_bf16_f32 {vr(s)}, {vr(s)}, {vr(s+1)}"); A.e(f"v_cvt_pk_bf16_f32 {vr(s+1)}, {vr(s+2)}, {vr(s+3)}")
        A.e(f"ds_write_b64 {vr(vKL)}, {vr(s,2)} offset:{2048*i}")
    A.e("s_waitcnt lgkmcnt(0)"); A.e("s_barrier")
    stamp(6) if "st_img" in opts else None

    T = Lgkm(A)
    def kv_reads(p):
        st = aKV + (p & 1)*16; gam = p & 3; hA = 2*p*800; hB = hA + 800
        return [(f"ds_read_b64 {ar(st+8,2)}, {vr(vC1A+gam)} offset:{hA+32}", ("kv", p, 0)),
                (f"ds_read_b64 {ar(st+10,2)}, {vr(vM1A)} offset:{hA}", ("kv", p, 0)),
                (f"ds_read_b64 {ar(st+0,2)}, {vr(vC0+gam)} offset:{hA+32}", ("kv", p, 1)),
                (f"ds_read_b64 {ar(st+2,2)}, {vr(vM0)} offset:{hA}", ("kv", p, 1)),
                (f"ds_read_b64 {ar(st+4,2)}, {vr(vM0)} offset:{hB+8}", ("kv", p, 2)),
                (f"ds_read_b64 {ar(st+6,2)}, {vr(vC0+gam)} offset:{hB}", ("kv", p, 2)),
                (f"ds_read_b64 {ar(st+12,2)}, {vr(vM1B)} offset:{hB+8}", ("kv", p, 3)),
                (f"ds_read_b64 {ar(st+14,2)}, {vr(vC1B+gam)} offset:{hB}", ("kv", p, 3))]
    def wo_reads(p):
        st = aWO + (p & 1)*24; l = []
        for tau in range(6):
            m, h = tau >> 1, tau & 1
            for sec in range(2):
                if p < 8:
                    kap = (p & 1) ^ sec
                    l.append((f"ds_read_b64_tr_b16 {ar(st+4*tau+2*sec,2)}, {vr(vB+(h^kap))} offset:{(36*p + 20*sec)*192 + 64*m}", ("wo", p, tau)))
                else:
                    l.append((f"ds_read_b64_tr_b16 {ar(st+4*tau+2*sec,2)}, {vr(vE+h)} offset:{sec*144*192 + 64*m}", ("wo", p, tau)))
        return l
    def O(sg, p): return vO + ((p & 1)*2 + sg)*12
    def o_mfmas(p):
        st = aKV + (p & 1)*16; l = []
        for sg in range(2):
            o = O(sg, p); x = X(sg, p)
            l.append((f"v_mfma_f32_16x16x32_bf16 {vr(o+8,4)}, {ar(st+8,4)}, {ar(x,4)}, {vr(vEpsC,4)}", ("kv", p, 0)))
            l.append((f"v_mfma_f32_16x16x32_bf16 {vr(o,4)}, {ar(st,4)}, {ar(x,4)}, 0", ("kv", p, 1)))
            l.append((f"v_mfma_f32_16x16x32_bf16 {vr(o+4,4)}, {ar(st+4,4)}, {ar(x+4,4)}, 0", ("kv", p, 2)))
            l.append((f"v_mfma_f32_16x16x32_bf16 {vr(o+8,4)}, {ar(st+12,4)}, {ar(x+4,4)}, {vr(o+8,4)}", ("kv", p, 3)))
        return l
    def valu(p, sg):
        o = O(sg, p); rA = vRc + sg*4; rB = rA + 2; rX = rA + 1; f = vOf + ((p & 1)*2 + sg)*4
        return [f"v_rcp_f32 {vr(rA)}, {vr(o+9)}", f"v_rcp_f32 {vr(rB)}, {vr(o+10)}",
                f"v_pk_mul_f32 {vr(o,2)}, {vr(o,2)}, {vr(rA,2)} op_sel_hi:[1,0]", f"v_pk_mul_f32 {vr(o+2,2)}, {vr(o+2,2)}, {vr(rA,2)} op_sel_hi:[1,0]",
                f"v_pk_mul_f32 {vr(o+4,2)}, {vr(o+4,2)}, {vr(rB,2)} op_sel_hi:[1,0]", f"v_pk_mul_f32 {vr(o+6,2)}, {vr(o+6,2)}, {vr(rB,2)} op_sel_hi:[1,0]",
                f"v_cndmask_b32 {vr(rX)}, {vr(rB)}, {vr(rA)}, s[{sG2}:{sG2+1}]",
                f"v_cvt_pk_bf16_f32 {vr(f)}, {vr(o)}, {vr(o+1)}", f"v_cvt_pk_bf16_f32 {vr(f+1)}, {vr(o+2)}, {vr(o+3)}",
                f"v_cvt_pk_bf16_f32 {vr(f+2)}, {vr(o+4)}, {vr(o+5)}", f"v_cvt_pk_bf16_f32 {vr(f+3)}, {vr(o+6)}, {vr(o+7)}",
                f"v_mul_f32 {vr(vEx+sg*8+p)}, {vr(o+8)}, {vr(rX)}"]
    def main_mfmas(p):
        st = aWO + (p & 1)*24; l = []
        for tau in range(6):
            for sg in range(2):
                d = vr(vA2 + (sg*6 + tau)*4, 4); f = vOf + ((p & 1)*2 + sg)*4
                l.append((f"v_mfma_f32_16x16x32_bf16 {d}, {ar(st+4*tau,4)}, {vr(f,4)}, {d}", ("wo", p, tau)))
        return l
    for ins, tg in kv_reads(0): T.issue(ins, tg)
    for ins, tg in kv_reads(1): T.issue(ins, tg)
    for ins, tg in o_mfmas(0): T.need(tg); A.e(ins)
    for ins, tg in wo_reads(0): T.issue(ins, tg)
    for i in valu(0, 0)[:2]: A.e(i)
    A.e("s_nop 0")
    for i in valu(0, 0)[2:]: A.e(i)
    v1 = valu(0, 1)
    for i in v1[:2]: A.e(i)
    A.e("s_nop 0")
    for i in v1[2:]: A.e(i)
    for i in range(9):
        om = o_mfmas(i+1) if i + 1 < 8 else []
        mm = main_mfmas(i)
        rd = (kv_reads(i+2) if i + 2 < 8 else []) + (wo_reads(i+1) if i + 1 <= 8 else [])
        if i + 1 < 8: vl = valu(i+1, 0) + valu(i+1, 1)
        elif i + 1 == 8:
            vl = []
            for sg in range(2):
                f = vOf + sg*4
                for h in range(4): vl.append(f"v_cvt_pk_bf16_f32 {vr(f+h)}, {vr(vEx+sg*8+2*h)}, {vr(vEx+sg*8+2*h+1)}")
        else: vl = []
        seq = om + mm
        nslot = len(seq)
        rs = [[] for _ in range(nslot)]
        for k, r in enumerate(rd): rs[(k*min(nslot, max(1, nslot-2)))//len(rd)].append(r)
        vs = [[] for _ in range(nslot)]
        if vl:
            if om:
                lo0, lo1 = 7, 12
                h = len(vl)//2
                for k in range(h): vs[lo0 + (k*(lo1-lo0+1))//h].append(vl[k])
                for k in range(h): vs[min(nslot-1, lo1 + 1 + (k*(nslot-lo1-1))//h)].append(vl[h+k])
            else:
                for k, x in enumerate(vl): vs[min(nslot-1, 1 + (k*(nslot-2))//len(vl))].append(x)
        mpos = {}
        firstv = {0: True, 1: True}
        for s in range(nslot):
            ins, tg = seq[s]
            T.need(tg); A.e(ins)
            if om and s < 8: mpos[s // 4] = len(A.L)
            for r, t2 in rs[s]: T.issue(r, t2)
            for x in vs[s]:
                if om and x.startswith("v_rcp"):
                    sgx = 0 if firstv[0] else 1
                    key = 0 if (x in valu(i+1, 0)) else 1
                    d = len(A.L) - mpos[key]
                    if d < 9: A.nop(9 - d)
                A.e(x)
        A.e("s_nop 1")
    stamp(6) if "st_img" not in opts else None
    A.e(f"s_mul_i32 s{sT0}, s{sWave}, 6144"); A.e(f"s_add_u32 s{sT0}, s{sT0}, {XB}")
    A.e(f"v_lshlrev_b32 {vr(vT[0])}, 4, {vr(vLane)}"); A.e(f"v_add_u32 {vr(vT[1])}, s{sT0}, {vr(vT[0])}")
    A.e(f"s_xor_b32 s{sT1}, s{sWave}, 2"); A.e(f"s_mul_i32 s{sT1}, s{sT1}, 6144"); A.e(f"s_add_u32 s{sT1}, s{sT1}, {XB}")
    A.e(f"v_add_u32 {vr(vT[2])}, s{sT1}, {vr(vT[0])}")
    A.e(f"s_mul_i32 s{sT1}, s{sWave}, 3328"); A.e(f"s_add_u32 s{sT1}, s{sT1}, {KVI}")
    A.e(f"v_mul_u32_u24 {vr(vOT)}, 208, {vr(vL15)}"); A.e(f"v_lshl_add_u32 {vr(vOT)}, {vr(vG)}, 3, {vr(vOT)}"); A.e(f"v_add_u32 {vr(vOT)}, s{sT1}, {vr(vOT)}")
    for i in range(3):
        if i: A.e(f"v_add_u32 {vr(vT[3])}, {64*i}, {vr(vLane)}")
        Lr = vT[3] if i else vLane
        A.e(f"v_mul_u32_u24 {vr(vT[4])}, 5462, {vr(Lr)}"); A.e(f"v_lshrrev_b32 {vr(vT[4])}, 16, {vr(vT[4])}")
        A.e(f"v_mul_u32_u24 {vr(vT[5])}, 12, {vr(vT[4])}"); A.e(f"v_sub_u32 {vr(vT[5])}, {vr(Lr)}, {vr(vT[5])}")
        A.e(f"v_mul_u32_u24 {vr(vT[4])}, 208, {vr(vT[4])}"); A.e(f"v_lshl_add_u32 {vr(vT[4])}, {vr(vT[5])}, 4, {vr(vT[4])}")
        A.e(f"v_add_u32 {vr(vF+60+i)}, s{sT1}, {vr(vT[4])}")
    A.e(f"s_cmp_eq_u32 s{sKh}, 0"); A.e(f"s_cbranch_scc0 {name}_k1")
    for tau in range(6): A.e(f"ds_write_b128 {vr(vT[1])}, {vr(vA2+(6+tau)*4,4)} offset:{tau*1024}")
    A.e(f"s_branch {name}_k2")
    A.label(f"{name}_k1")
    for tau in range(6): A.e(f"ds_write_b128 {vr(vT[1])}, {vr(vA2+tau*4,4)} offset:{tau*1024}")
    A.e("s_waitcnt lgkmcnt(0)")
    for i in range(24): A.e(f"v_mov_b32 {vr(vA2+i)}, {vr(vA2+24+i)}")
    A.label(f"{name}_k2")
    A.e("s_waitcnt lgkmcnt(0)"); A.e("s_barrier")
    for tau in range(6): A.e(f"ds_read_b128 {vr(vF+tau*4,4)}, {vr(vT[2])} offset:{tau*1024}")
    nW = 0
    for tau in range(6):
        A.e(f"s_waitcnt lgkmcnt({(5-tau) + nW})")
        for h in range(2): A.e(f"v_pk_add_f32 {vr(vA2+tau*4+2*h,2)}, {vr(vA2+tau*4+2*h,2)}, {vr(vF+tau*4+2*h,2)}")
        A.e(f"v_cvt_pk_bf16_f32 {vr(vF+24+tau*2)}, {vr(vA2+tau*4)}, {vr(vA2+tau*4+1)}")
        A.e(f"v_cvt_pk_bf16_f32 {vr(vF+24+tau*2+1)}, {vr(vA2+tau*4+2)}, {vr(vA2+tau*4+3)}")
        A.e(f"ds_write_b64 {vr(vOT)}, {vr(vF+24+tau*2,2)} offset:{tau*32}"); nW += 1
    A.e("s_waitcnt lgkmcnt(0)")
    for i in range(3): A.e(f"ds_read_b128 {vr(vF+40+4*i,4)}, {vr(vF+60+i)}")
    for i in range(3):
        A.e(f"s_waitcnt lgkmcnt({2-i})")
        A.e(f"buffer_store_dwordx4 {vr(vF+40+4*i,4)}, {vr(vOad+i)}, s[{SOUT}:{SOUT+3}], 0 offen")
    A.label(f"{name}_fin")
    if stamps:
        A.e("s_waitcnt vmcnt(0)")
        A.e("s_memtime s[4:5]"); A.e("s_memrealtime s[6:7]")
        A.e("s_waitcnt lgkmcnt(0)")
        for k in range(1, 7): A.e(f"s_sub_u32 s{sSt+2*k}, s{sSt+2*k}, s{sSt}")
        A.e(f"s_sub_u32 s4, s4, s{sSt}")
        A.e(f"s_lshl_b32 s{sT0}, s2, 2"); A.e(f"s_add_u32 s{sT0}, s{sT0}, s{sWave}"); A.e(f"s_lshl_b32 s{sT0}, s{sT0}, 6"); A.e(f"s_add_u32 s{sT0}, s{sT0}, 0x400000")
        for k in range(1, 7): A.e(f"v_mov_b32 {vr(vF+k)}, s{sSt+2*k}")
        A.e(f"v_mov_b32 {vr(vF)}, s4"); A.e(f"v_mov_b32 {vr(vF+7)}, s16"); A.e(f"v_mov_b32 {vr(vF+8)}, s6")
        for k in range(9, 12): A.e(f"v_mov_b32 {vr(vF+k)}, 0")
        A.e(f"v_mov_b32 {vr(vT[0])}, s{sT0}")
        A.e(f"v_cmp_eq_u32 vcc, 0, {vr(vLane)}"); A.e(f"s_and_saveexec_b64 s[{sExec}:{sExec+1}], vcc")
        for k in range(3): A.e(f"global_store_dwordx4 {vr(vT[0])}, {vr(vF+4*k,4)}, s[{PWS}:{PWS+1}] offset:{16*k}")
    A.label(f"{name}_end")
    A.e("s_endpgm")

if __name__ == "__main__":
    opts = sys.argv[1:]
    A = Asm()
    for l in open("standalone__linear_attn_block__prompt.s.ref").read().split("\n"):
        if l.startswith(";") and "@launch" not in l and "Override launch" not in l and "grid=ceil" not in l: A.L.append(l)
        elif not l.startswith(";"): break
    name = "standalone__linear_attn_block__prompt_kernel"
    A.L.append(f"; @launch grid=(256,1,1) block=(256,1,1) lds={LDS_BYTES}")
    A.L.append('.amdgcn_target "amdgcn-amd-amdhsa--gfx950"')
    A.L.append(".text"); A.L.append(f".globl {name}"); A.L.append(".p2align 8"); A.L.append(f".type {name},@function")
    gen(A, name, opts)
    A.L.append('.section .rodata,"a"'); A.L.append(".p2align 6")
    A.L.append(f".amdhsa_kernel {name}")
    A.L.append("  .amdhsa_next_free_vgpr 472"); A.L.append("  .amdhsa_next_free_sgpr 102"); A.L.append("  .amdhsa_accum_offset 256")
    A.L.append("  .amdhsa_group_segment_fixed_size 0"); A.L.append("  .amdhsa_kernarg_size 48"); A.L.append("  .amdhsa_user_sgpr_count 2")
    A.L.append("  .amdhsa_user_sgpr_kernarg_segment_ptr 1"); A.L.append("  .amdhsa_system_sgpr_workgroup_id_x 1"); A.L.append(".end_amdhsa_kernel")
    print(A.text())
```
